```python
import torch

def _softmax(x, axis=-1):
    return torch.softmax(x, dim=axis)
def _gelu(x):
    return torch.nn.functional.gelu(x, approximate="tanh")
def _silu(x):
    return torch.nn.functional.silu(x)
def _sigmoid(x):
    return torch.sigmoid(x)
def _layernorm(x, axis=-1, eps=1e-5):
    m = x.mean(dim=axis, keepdim=True)
    v = x.var(dim=axis, keepdim=True, unbiased=False)
    return (x - m) / torch.sqrt(v + eps)
def _scatter_add(tgt, idx, src, axis=0):
    return tgt.clone().index_add_(axis, idx, src)
def _segment_sum(src, seg, n):
    out = torch.zeros((n,) + src.shape[1:], dtype=src.dtype)
    return out.index_add_(0, seg, src)
def _pad(x, pw):
    flat = tuple(v for pair in reversed(pw) for v in pair)
    return torch.nn.functional.pad(x, flat)

kernel_name = 'interleave_layers__linear_kernel_hedgehog__glu_gated_glu__prompt'

def setup_inputs():

    _w = (lambda a: (lambda t: t.to(torch.bfloat16) if t.is_floating_point() else t)(torch.as_tensor(a)))
    def _A_setup():
        B, S, D, H = 1, 2048, 512, 32
        Dh = D // H
        return {
            "x": _w((lambda *s: torch.randn(*s, dtype=torch.bfloat16) * 0.05)(B, S, D)),
            "wqkv": _w((lambda *s: torch.randn(*s, dtype=torch.bfloat16) * 0.4)(D, 3 * D)),
            "w_phi": _w((lambda *s: torch.randn(*s, dtype=torch.bfloat16) * 0.4)(H, Dh, Dh) * (Dh ** -0.5)),
            "wo": _w((lambda *s: torch.randn(*s, dtype=torch.bfloat16) * 0.05)(D, D)),
        }
    _A_in = _A_setup()

    def _B_setup():
        B, S, D, F = 1, 2048, 512, 1792
        return {
            "x": _w((lambda *s: torch.randn(*s, dtype=torch.bfloat16) * 0.05)(B, S, D)),
            "w_gate": _w((lambda *s: torch.randn(*s, dtype=torch.bfloat16) * 0.05)(D, F)),
            "w_up": _w((lambda *s: torch.randn(*s, dtype=torch.bfloat16) * 0.05)(D, F)),
            "w_down": _w((lambda *s: torch.randn(*s, dtype=torch.bfloat16) * 0.05)(F, D)),
        }
    _B_in = _B_setup()

    return {
        "A_x": _A_in["x"],
        "A_wqkv": _A_in["wqkv"],
        "A_w_phi": _A_in["w_phi"],
        "A_wo": _A_in["wo"],
        "B_x": _B_in["x"],
        "B_w_gate": _B_in["w_gate"],
        "B_w_up": _B_in["w_up"],
        "B_w_down": _B_in["w_down"],
    }

def reference(A_x, A_wqkv, A_w_phi, A_wo, B_x, B_w_gate, B_w_up, B_w_down):
    def _A_ref(x, wqkv, w_phi, wo):
        B, S, D = x.shape
        H = 32; Dh = D // H
        qkv = (lambda x, *d: x.permute(*d))((x @ wqkv).reshape(B, S, 3, H, Dh), 2, 0, 3, 1, 4)
        q, k, v = qkv[0], qkv[1], qkv[2]
        pq = torch.einsum("bhsd,hdf->bhsf", q, w_phi)
        pk = torch.einsum("bhsd,hdf->bhsf", k, w_phi)
        phi_q = torch.concatenate([_softmax(pq, axis=-1), _softmax(-pq, axis=-1)], axis=-1)
        phi_k = torch.concatenate([_softmax(pk, axis=-1), _softmax(-pk, axis=-1)], axis=-1)
        kv = torch.einsum("bhsf,bhsd->bhfd", phi_k, v)
        z  = torch.einsum("bhsf->bhf", phi_k)
        num = torch.einsum("bhqf,bhfd->bhqd", phi_q, kv)
        den = torch.einsum("bhqf,bhf->bhq", phi_q, z)[..., None] + 1e-6
        o = num / den
        return (lambda x, *d: x.permute(*d))(o, 0, 2, 1, 3).reshape(B, S, D) @ wo

    def _B_ref(x, w_gate, w_up, w_down):
        g = torch.einsum("bsd,df->bsf", x, w_gate)
        u = torch.einsum("bsd,df->bsf", x, w_up)
        h = _sigmoid(g) * u
        return torch.einsum("bsf,fd->bsd", h, w_down)

    x = A_x
    x = x + _A_ref(_layernorm(x, axis=-1), A_wqkv, A_w_phi, A_wo)
    x = x + _B_ref(_layernorm(x, axis=-1), B_w_gate, B_w_up, B_w_down)
    x = x + _A_ref(_layernorm(x, axis=-1), A_wqkv, A_w_phi, A_wo)
    x = x + _B_ref(_layernorm(x, axis=-1), B_w_gate, B_w_up, B_w_down)
    return x
```

```python
import re

KNAME = "interleave_layers__linear_kernel_hedgehog__glu_gated_glu__prompt_kernel"

_RNG = re.compile(r"^(-?)(?:abs\()?([vas])\[(\d+):(\d+)\]\)?$")
_ONE = re.compile(r"^(-?)(?:abs\()?([vas])(\d+)\)?$")

def regs_of(tok):
    tok = tok.strip()
    m = _RNG.match(tok)
    if m: return [(m.group(2), i) for i in range(int(m.group(3)), int(m.group(4)) + 1)]
    m = _ONE.match(tok)
    if m: return [(m.group(2), int(m.group(3)))]
    if tok in ("vcc", "vcc_lo", "vcc_hi"): return [("s", "vcc")]
    if tok in ("exec", "exec_lo", "exec_hi"): return [("s", "exec")]
    if tok == "m0": return [("s", "m0")]
    return []

TRANS = ("v_exp_f32", "v_log_f32", "v_rcp_f32", "v_rsq_f32", "v_sqrt_f32", "v_sin_f32", "v_cos_f32")

class Ins:
    __slots__ = ("text", "op", "kind", "rd", "wr", "states", "passes", "A", "B", "C", "D", "wide", "data", "lds")
    def __init__(self, text):
        self.text = text
        body = text.split(";")[0].strip()
        p = body.split(None, 1)
        self.op = op = p[0]
        rest = p[1] if len(p) > 1 else ""
        ops = [x.strip() for x in rest.split(",")] if rest else []
        if ops:
            last = ops[-1].split()
            mods = last[1:]
            ops[-1] = last[0] if last else ""
        else: mods = []
        self.rd, self.wr = [], []
        self.states = 1; self.passes = 0; self.A = self.B = self.C = self.D = None
        self.wide = False; self.data = []; self.lds = False
        R = [regs_of(o) for o in ops]
        flat = lambda L: [r for x in L for r in x]
        if op.startswith("v_mfma"):
            self.kind = "mfma"
            self.passes = 8 if "32x32" in op else 4
            self.D, self.A, self.B, self.C = R[0], R[1], R[2], R[3]
            self.wr = R[0]; self.rd = R[1] + R[2] + R[3]
        elif op.startswith("v_"):
            self.kind = "trans" if op.startswith(TRANS) else "valu"
            if op.startswith("v_permlane") :
                self.wr = R[0] + R[1]; self.rd = R[0] + R[1]
            elif op.startswith(("v_add_co", "v_sub_co", "v_addc_co", "v_subb_co")):
                self.wr = R[0] + R[1]; self.rd = flat(R[2:])
            elif op.startswith(("v_fmac", "v_dot2c", "v_writelane", "v_pk_fmac")):
                self.wr = R[0]; self.rd = flat(R)
            elif op == "v_nop":
                pass
            else:
                self.wr = R[0]; self.rd = flat(R[1:])
                if "dpp" in op or any(m.startswith(("row_", "quad_perm")) for m in mods): self.rd = self.rd + R[0]
        elif op.startswith("ds_read") or op.startswith("ds_bpermute") or op.startswith("ds_swizzle"):
            self.kind = "dsr"; self.wr = R[0]; self.rd = flat(R[1:])
        elif op.startswith("ds_"):
            self.kind = "dsw"; self.rd = flat(R)
        elif op.startswith("buffer_load"):
            self.kind = "vml"
            if "lds" in mods:
                self.lds = True; self.rd = flat(R) + [("s", "m0")]
            else:
                self.wr = R[0]; self.rd = flat(R[1:])
        elif op.startswith("global_load"):
            self.kind = "vml"; self.wr = R[0]; self.rd = flat(R[1:])
        elif op.startswith("buffer_store"):
            self.kind = "vms"; self.rd = flat(R); self.data = R[0]
            self.wide = op.endswith(("x3", "x4"))
        elif op.startswith("s_load") or op.startswith("s_memtime") or op.startswith("s_memrealtime"):
            self.kind = "smem"; self.wr = R[0]; self.rd = flat(R[1:])
        elif op == "s_nop":
            self.kind = "nop"; self.states = int(ops[0], 0) + 1
        elif op.startswith("s_"):
            self.kind = "salu"
            if op.startswith(("s_cmp", "s_bitcmp", "s_cbranch", "s_branch", "s_waitcnt", "s_barrier", "s_sleep", "s_setprio", "s_endpgm")):
                self.rd = flat(R)
            else:
                self.wr = R[0]; self.rd = flat(R[1:])
        else:
            raise ValueError("unknown instruction " + text)

def ov(a, b):
    return bool(set(a) & set(b))

def need_states(p, c):
    n = 0
    pv = p.kind in ("valu", "trans")
    cv = c.kind in ("valu", "trans")
    pw_v = [r for r in p.wr if r[0] in "va"]
    pw_s = [r for r in p.wr if r[0] == "s"]
    if pv:
        if c.kind == "mfma" and ov(pw_v, c.rd): n = max(n, 2)
        if cv and c.op.startswith("v_permlane") and ov(pw_v, c.rd): n = max(n, 2)
        if cv and ("dpp" in c.op or "row_" in c.text or "quad_perm" in c.text) and ov(pw_v, c.rd): n = max(n, 2)
        if cv and c.op.startswith(("v_readlane", "v_readfirstlane")) and ov(pw_v, c.rd): n = max(n, 1)
        if p.kind == "trans" and c.kind != "trans" and ov(pw_v, c.rd): n = max(n, 1)
        if pw_s:
            if c.kind in ("vml", "vms") and ov(pw_s, c.rd): n = max(n, 5)
            if cv and ov(pw_s, c.rd): n = max(n, 4 if c.op.startswith(("v_readlane", "v_writelane")) else 2)
            if cv and c.op.startswith("v_cndmask") and ("s", "vcc") in pw_s: n = max(n, 2)
            if c.kind in ("salu", "smem") and ov(pw_s, c.rd): n = max(n, 1)
    if p.kind == "mfma":
        far = 12 if p.passes == 8 else 8
        if c.kind == "mfma":
            if ov(p.D, c.A) or ov(p.D, c.B): n = max(n, far)
            if ov(p.D, c.C):
                if not (p.D == c.C and p.passes == c.passes): n = max(n, far - 2)
            elif ov(p.D, c.D): n = max(n, far)
        elif c.kind in ("valu", "trans", "dsr", "dsw", "vml", "vms"):
            if ov(p.D, c.rd) or ov(p.D, c.wr): n = max(n, far)
            if ov(p.C, c.wr): n = max(n, 7 if p.passes == 8 else 3)
    if p.kind == "vms" and p.wide and ov(p.data, c.wr): n = max(n, 2)
    if p.kind == "salu" and ("s", "m0") in p.wr and c.kind == "vml" and c.lds: n = max(n, 1)
    return n

class E:
    def __init__(self):
        self.out = []
        self.hist = []
        self.vm = []
        self.lg = []
        self.pend = {}
        self.smem_out = False
        self.nid = 0
        self.nops = 0
        self.nlab = 0
        self.count = {}
    def label(self, base="L"):
        self.nlab += 1
        return f"{base}_{self.nlab}"
    def raw(self, s): self.out.append(s)
    def comment(self, s): self.out.append("    ; " + s)
    def place(self, lab): self.out.append(lab + ":")
    def _push(self, ins):
        self.out.append("    " + ins.text)
        self.hist.append(ins)
        if len(self.hist) > 24: self.hist.pop(0)
        self.count[ins.kind] = self.count.get(ins.kind, 0) + 1
    def _retire(self, q, n):
        lst = self.vm if q == "vm" else self.lg
        done = set(lst[:max(0, len(lst) - n)])
        if not done: return
        del lst[:len(lst) - n]
        self.pend = {r: v for r, v in self.pend.items() if not (v[0] == q and v[1] in done)}
        if q == "lg" and n == 0: self.smem_out = False
    def waitcnt(self, vm=None, lg=None):
        parts = []
        if vm is not None: parts.append(f"vmcnt({min(vm, 63)})")
        if lg is not None: parts.append(f"lgkmcnt({min(lg, 15)})")
        self._push(Ins("s_waitcnt " + " ".join(parts)))
        if vm is not None: self._retire("vm", min(vm, 63))
        if lg is not None: self._retire("lg", min(lg, 15))
    def wait(self, *toks):
        vm = lg = None
        for t in toks:
            if t is None: continue
            q, i = t
            lst = self.vm if q == "vm" else self.lg
            if i not in lst: continue
            n = len(lst) - 1 - lst.index(i)
            if q == "lg" and self.smem_out: n = 0
            if q == "vm": vm = n if vm is None else min(vm, n)
            else: lg = n if lg is None else min(lg, n)
        if vm is not None or lg is not None: self.waitcnt(vm, lg)
    def drain(self):
        if self.vm or self.lg: self.waitcnt(0 if self.vm else None, 0 if self.lg else None)
    def __call__(self, text):
        tok = None
        for line in text.strip("\n").split("\n"):
            line = line.strip()
            if not line or line.startswith(";"): continue
            if line.endswith(":"):
                self.place(line[:-1]); continue
            tok = self.ins(line)
        return tok
    def ins(self, line):
        c = Ins(line)
        if c.op == "s_waitcnt":
            m = re.search(r"vmcnt\((\d+)\)", line); v = int(m.group(1)) if m else None
            m = re.search(r"lgkmcnt\((\d+)\)", line); l = int(m.group(1)) if m else None
            self.waitcnt(v, l); return None
        self.wait(*[self.pend[r] for r in set(c.rd) | set(c.wr) if r in self.pend])
        if c.kind in ("vml", "vms") and len(self.vm) >= 60: self.waitcnt(vm=44)
        need, dist = 0, 0
        for p in reversed(self.hist):
            need = max(need, need_states(p, c) - dist)
            dist += p.states
            if dist >= 20: break
        while need > 0:
            k = min(need, 16)
            self._push(Ins(f"s_nop {k-1}")); self.nops += k; need -= k
        self._push(c)
        tok = None
        if c.kind in ("vml", "vms"):
            self.nid += 1; self.vm.append(self.nid); tok = ("vm", self.nid)
            assert len(self.vm) <= 63, "too many outstanding vmem ops"
        elif c.kind in ("dsr", "dsw", "smem"):
            self.nid += 1; self.lg.append(self.nid); tok = ("lg", self.nid)
            if c.kind == "smem": self.smem_out = True
        if tok and c.kind in ("vml", "dsr", "smem"):
            for r in c.wr: self.pend[r] = tok
        return tok
    def text(self): return "\n".join(self.out) + "\n"

def wrap(body, grid, block, lds, header="", vgpr=512, accum=256, sgpr=102):
    return f"""{header}; @launch grid=({grid},1,1) block=({block},1,1) lds={lds}
.amdgcn_target "amdgcn-amd-amdhsa--gfx950"
.text
.globl {KNAME}
.p2align 8
.type {KNAME},@function
{KNAME}:
{body}
.section .rodata,"a"
.p2align 6
.amdhsa_kernel {KNAME}
  .amdhsa_next_free_vgpr {vgpr}
  .amdhsa_next_free_sgpr {sgpr}
  .amdhsa_accum_offset {accum}
  .amdhsa_group_segment_fixed_size 0
  .amdhsa_kernarg_size 88
  .amdhsa_user_sgpr_count 2
  .amdhsa_user_sgpr_kernarg_segment_ptr 1
  .amdhsa_system_sgpr_workgroup_id_x 1
  .amdhsa_float_denorm_mode_32 3
.end_amdhsa_kernel
"""
```

```python
import sys, os
sys.path.insert(0, os.path.dirname(os.path.abspath(__file__)))
from emit import *

OFF_EPOCH = 0
OFF_G     = 0x1000
OFF_LF    = 0x2000
OFF_KV    = 0x10000
KVREC     = 2176
TILE      = 33792
OFF_WQKV  = 0x200000
OFF_WGU   = 0x400000
OFF_WD    = 0x800000
OFF_WO    = 0xA00000
OFF_X     = 0xB00000
OFF_O     = 0xE00000
OFF_H     = 0x1000000
OFF_DBG   = 0x2000000
WS_SIZE   = 0x10000000
SCR       = 4 * TILE
LDS_SIZE  = 163840

sWS, sWP, sWI, sSA, sSB = 8, 12, 16, 20, 24
sW, sR, sC, sTH, sFB = 28, 29, 30, 31, 32
sEP, sTAG, sTAG2, sXCC = 33, 34, 35, 36
sLF, sMYF = 37, 38
sXW, sXS = 39, 40
sXST = 41
sOS, sOL = 42, 43
sHS, sHL = 44, 45
sWQ, sWG, sWD_, sWO_ = 46, 47, 48, 49
sKVS, sKVL = 50, 51
sM0W = 52
sEXQ = 54
sT0, sT1, sT2, sT3, sT4, sT5 = 56, 57, 58, 59, 60, 61
sSPIN = 62
sDMA, sLD, sLD2 = 63, 64, 65
sOUT = 68
sOUTO = 72
sTS = 74
sT0S = 76
sPTR = 80

vL16, vSLOT, vLX, vPX, vPO, vZ, vSTO = 1, 2, 6, 7, 8, 9, 10
vC1, vC2, vT0, vT1, vT2 = 11, 12, 13, 14, 15
vMEAN, vWF, vTMP, vACC, vSLAB = 16, 20, 36, 64, 128
vSTAMP = 0
aWD, aRES, aPHI, aSEL, aONE = 0, 224, 240, 248, 252

LOG2E = 1.4426950408889634
import struct
def f2u(x): return struct.unpack("<I", struct.pack("<f", x))[0]
def vr(b, n=4): return f"v[{b}:{b+n-1}]"
def ar(b, n=4): return f"a[{b}:{b+n-1}]"
def sr(b, n=4): return f"s[{b}:{b+n-1}]"

class K:
    def __init__(self, dbg=False, stop=None):
        self.e = E()
        self.dbg = dbg
        self.stop = stop
        self.nstamp = 0
        self.stamp_names = []
        self.phase = 0

    def stamp(self, name):
        if not self.dbg: return
        e = self.e
        e(f"s_memtime {sr(sTS,2)}")
        e("s_waitcnt lgkmcnt(0)")
        e(f"s_sub_u32 s{sTS}, s{sTS}, s{sT0S}")
        e(f"v_writelane_b32 v{vSTAMP}, s{sTS}, {self.nstamp}")
        self.stamp_names.append(name); self.nstamp += 1

    def poll(self, vaddr, sbase, phase):
        e = self.e
        L = e.label("POLL")
        e(f"s_mov_b32 s{sSPIN}, 0")
        e.place(L)
        e(f"buffer_load_dword v{vT0}, v{vaddr}, {sr(sWS)}, s{sbase} offen sc1")
        e(f"s_add_u32 s{sSPIN}, s{sSPIN}, 1")
        e(f"s_cmp_gt_u32 s{sSPIN}, 0x200000")
        e("s_cbranch_scc1 L_fail")
        e("s_waitcnt vmcnt(0)")
        e(f"v_cmp_gt_u32 vcc, {phase}, v{vT0}")
        e(f"s_cbranch_vccnz {L}")

    def store2(self, op, data, vaddr, soff, imm=0):
        e = self.e
        o = f" offset:{imm}" if imm else ""
        e(f"{op} {data}, v{vaddr}, {sr(sWP)}, s{soff} offen{o}")
        return e(f"{op} {data}, v{vaddr}, {sr(sWI)}, s{soff} offen{o} sc1")

    def signal(self):
        e = self.e
        self.phase += 1
        e(f"v_mov_b32 v{vT0}, {self.phase}")
        e("s_waitcnt vmcnt(0)")
        e("s_mov_b64 exec, 1")
        self.store2("buffer_store_dword", f"v{vT0}", vZ, sMYF)
        e("s_mov_b64 exec, -1")
        return self.phase

    def dma_tile(self, n, sbase, toff):
        slot = (n % 4) * TILE
        g = []
        for i in range(8):
            x = []
            if i % 4 == 0:
                x.append(f"s_add_u32 m0, s{sM0W}, {slot + i*1024}")
                x.append(f"s_add_u32 s{sDMA}, s{sbase}, {toff + i*1024}")
            x.append(f"buffer_load_dwordx4 v{vL16}, {sr(sWS)}, s{sDMA} offen offset:{(i%4)*1024} lds")
            g.append(x)
        g.append([f"s_mov_b32 m0, {slot + 32768}",
                  f"s_sub_u32 s{sDMA}, s{sbase}, s{sM0W}",
                  f"s_add_u32 s{sDMA}, s{sDMA}, {toff + 32768}",
                  f"s_mov_b64 exec, {sr(sEXQ,2)}",
                  f"buffer_load_dwordx4 v{vL16}, {sr(sWS)}, s{sDMA} offen lds",
                  f"s_mov_b64 exec, -1"])
        return g

    def tile_src(self, n):
        i = n % 10
        return (sWQ, i * TILE) if i < 3 else (sWG, (i - 3) * TILE)

    def dma(self, n):
        if n >= 20: return []
        return self.dma_tile(n, *self.tile_src(n))

    def run(self, groups):
        tok = None
        for g in groups:
            for x in g:
                t = self.e(x)
                if t and t[0] == "vm": tok = t
        return tok

    def loads(self, dst, n, sbase, sreg, vaddr=vL16, flags="sc1", step=1024, agpr=False, first=0, ring=None):
        g = []
        per = 4096 // step
        for i in range(n):
            x = []
            if i % per == 0: x.append(f"s_add_u32 s{sreg}, s{sbase}, {first + i*step}")
            r = dst + 4 * (i if ring is None else i % ring)
            x.append(f"buffer_load_dwordx4 {ar(r) if agpr else vr(r)}, v{vaddr}, {sr(sWS)}, s{sreg} offen offset:{(i%per)*step} {flags}".rstrip())
            g.append(x)
        return g

    def prologue(self):
        e = self.e
        e(f"""
        s_cmp_ge_u32 s2, 256
        s_cbranch_scc1 L_end
        """)
        if self.dbg: e(f"s_memtime {sr(sT0S,2)}")
        e(f"""
        s_load_dwordx16 s[{sPTR}:{sPTR+15}], s[0:1], 0
        s_load_dwordx4 s[{sPTR+16}:{sPTR+19}], s[0:1], 64
        s_load_dwordx2 s[{sPTR+20}:{sPTR+21}], s[0:1], 80
        v_lshrrev_b32 v{vT0}, 6, v0
        v_and_b32 v{vT1}, 63, v0
        v_readfirstlane_b32 s{sW}, v{vT0}
        v_lshlrev_b32 v{vL16}, 4, v{vT1}
        s_getreg_b32 s{sXCC}, hwreg(HW_REG_XCC_ID, 0, 4)
        s_and_b32 s{sC}, s2, 7
        s_lshl_b32 s{sC}, s{sC}, 1
        s_lshr_b32 s{sT0}, s2, 7
        s_add_u32 s{sC}, s{sC}, s{sT0}
        s_lshr_b32 s{sR}, s2, 3
        s_and_b32 s{sR}, s{sR}, 15
        s_lshr_b32 s{sTH}, s{sR}, 3
        s_and_b32 s{sFB}, s{sR}, 7
        s_waitcnt lgkmcnt(0)
        s_load_dword s{sEP}, s[{sPTR+20}:{sPTR+21}], {OFF_EPOCH}
        """)
        for srd in (sWS, sWP, sWI):
            e(f"""
            s_mov_b32 s{srd}, s{sPTR+20}
            s_mov_b32 s{srd+1}, s{sPTR+21}
            s_mov_b32 s{srd+2}, {WS_SIZE if srd != sWP else 0}
            s_mov_b32 s{srd+3}, 0x20000
            """)
        e(f"""
        s_mov_b32 s{sOUT}, s{sPTR+16}
        s_mov_b32 s{sOUT+1}, s{sPTR+17}
        s_mov_b32 s{sOUT+2}, 0x200000
        s_mov_b32 s{sOUT+3}, 0x20000
        v_mov_b32 v{vZ}, 0
        """)
        if self.dbg: e(f"v_mov_b32 v{vSTAMP}, 0")
        for i in range(4):
            e(f"v_add_u32 v{vSLOT+i}, {i*TILE}, v{vL16}")
        e(f"""
        s_lshl_b32 s{sM0W}, s{sW}, 13
        s_lshl_b32 s{sT0}, s{sW}, 4
        s_mov_b64 s[{sEXQ}:{sEXQ+1}], 0xffff
        s_lshl_b64 s[{sEXQ}:{sEXQ+1}], s[{sEXQ}:{sEXQ+1}], s{sT0}
        s_and_b32 s{sT0}, s{sW}, 1
        s_lshl_b32 s{sT0}, s{sT0}, 8
        v_xor_b32 v{vLX}, s{sT0}, v{vL16}
        s_lshl_b32 s{sT0}, s{sW}, 2
        v_add_u32 v{vSTO}, s{sT0}, v{vL16}
        s_lshl_b32 s{sLF}, s{sC}, 9
        s_add_u32 s{sLF}, s{sLF}, {OFF_LF}
        s_lshl_b32 s{sT0}, s{sW}, 7
        s_lshl_b32 s{sT1}, s{sR}, 2
        s_add_u32 s{sMYF}, s{sLF}, s{sT0}
        s_add_u32 s{sMYF}, s{sMYF}, s{sT1}
        v_bfe_u32 v{vT0}, v{vT1}, 3, 2
        v_lshlrev_b32 v{vT0}, 7, v{vT0}
        v_and_b32 v{vT2}, 7, v{vT1}
        v_lshl_add_u32 v{vPX}, v{vT2}, 2, v{vT0}
        s_lshr_b32 s{sT0}, s{sW}, 1
        s_lshl_b32 s{sT0}, s{sT0}, 5
        v_add_u32 v{vPX}, s{sT0}, v{vPX}
        v_bfe_u32 v{vT0}, v{vT1}, 2, 1
        v_lshlrev_b32 v{vT0}, 7, v{vT0}
        v_and_b32 v{vT2}, 3, v{vT1}
        v_lshl_add_u32 v{vPO}, v{vT2}, 2, v{vT0}
        s_lshl_b32 s{sT0}, s{sTH}, 8
        s_lshl_b32 s{sT1}, s{sW}, 4
        s_add_u32 s{sT0}, s{sT0}, s{sT1}
        v_add_u32 v{vPO}, s{sT0}, v{vPO}
        ; X
        s_mul_i32 s{sT0}, s{sC}, {160*1024}
        s_add_u32 s{sT0}, s{sT0}, {OFF_X}
        s_mul_i32 s{sT1}, s{sW}, {40*1024}
        s_add_u32 s{sXW}, s{sT0}, s{sT1}
        s_mul_i32 s{sT1}, s{sTH}, {80*1024}
        s_add_u32 s{sT0}, s{sT0}, s{sT1}
        s_lshl_b32 s{sT1}, s{sFB}, 2
        s_add_u32 s{sT1}, s{sT1}, s{sW}
        s_lshl_b32 s{sT1}, s{sT1}, 10
        s_add_u32 s{sXS}, s{sT0}, s{sT1}
        s_lshl_b32 s{sT1}, s{sFB}, 10
        s_add_u32 s{sXST}, s{sT0}, s{sT1}
        s_add_u32 s{sXST}, s{sXST}, {32*1024}
        ; O
        s_lshl_b32 s{sT0}, s{sC}, 17
        s_add_u32 s{sT0}, s{sT0}, {OFF_O}
        s_lshl_b32 s{sT1}, s{sW}, 15
        s_lshl_b32 s{sT2}, s{sR}, 11
        s_add_u32 s{sOS}, s{sT0}, s{sT1}
        s_add_u32 s{sOS}, s{sOS}, s{sT2}
        s_lshl_b32 s{sT1}, s{sTH}, 16
        s_add_u32 s{sOL}, s{sT0}, s{sT1}
        s_add_u32 s{sOL}, s{sOL}, s{sM0W}
        ; H
        s_mul_i32 s{sT0}, s{sC}, {448*1024}
        s_add_u32 s{sT0}, s{sT0}, {OFF_H}
        s_mul_i32 s{sT1}, s{sW}, {112*1024}
        s_mul_i32 s{sT2}, s{sR}, {7*1024}
        s_add_u32 s{sHS}, s{sT0}, s{sT1}
        s_add_u32 s{sHS}, s{sHS}, s{sT2}
        s_mul_i32 s{sT1}, s{sTH}, {224*1024}
        s_mul_i32 s{sT2}, s{sW}, {28*1024}
        s_add_u32 s{sHL}, s{sT0}, s{sT1}
        s_add_u32 s{sHL}, s{sHL}, s{sT2}
        ; weights
        s_mul_i32 s{sWQ}, s{sR}, {3*TILE}
        s_add_u32 s{sWQ}, s{sWQ}, {OFF_WQKV}
        s_add_u32 s{sWQ}, s{sWQ}, s{sM0W}
        s_mul_i32 s{sWG}, s{sR}, {7*TILE}
        s_add_u32 s{sWG}, s{sWG}, {OFF_WGU}
        s_add_u32 s{sWG}, s{sWG}, s{sM0W}
        s_mul_i32 s{sWD_}, s{sFB}, {224*1024}
        s_mul_i32 s{sT0}, s{sW}, {56*1024}
        s_add_u32 s{sWD_}, s{sWD_}, s{sT0}
        s_add_u32 s{sWD_}, s{sWD_}, {OFF_WD}
        s_lshl_b32 s{sWO_}, s{sFB}, 16
        s_lshl_b32 s{sT0}, s{sW}, 14
        s_add_u32 s{sWO_}, s{sWO_}, s{sT0}
        s_add_u32 s{sWO_}, s{sWO_}, {OFF_WO}
        s_lshr_b32 s{sT0}, s{sW}, 1
        s_lshl_b32 s{sT0}, s{sT0}, 10
        v_add_u32 v{vLX}, s{sT0}, v{vLX}
        ; kv
        s_mul_i32 s{sKVL}, s{sR}, {16*KVREC}
        s_add_u32 s{sKVL}, s{sKVL}, {OFF_KV}
        s_mul_i32 s{sT0}, s{sC}, {KVREC}
        s_add_u32 s{sKVS}, s{sKVL}, s{sT0}
        s_lshl_b32 s{sOUTO}, s{sC}, 1
        s_add_u32 s{sOUTO}, s{sOUTO}, s{sTH}
        s_lshl_b32 s{sOUTO}, s{sOUTO}, 16
        s_lshl_b32 s{sT0}, s{sFB}, 7
        s_lshl_b32 s{sT1}, s{sW}, 5
        s_add_u32 s{sOUTO}, s{sOUTO}, s{sT0}
        s_add_u32 s{sOUTO}, s{sOUTO}, s{sT1}
        """)

    def lane(self, dst):
        self.e(f"v_lshrrev_b32 v{dst}, 4, v{vL16}")

    def row_addr(self, dst, tmp):
        e = self.e
        e(f"v_and_b32 v{tmp}, 0x1f0, v{vL16}")
        e(f"v_lshlrev_b32 v{tmp}, 6, v{tmp}")
        e(f"v_lshrrev_b32 v{dst}, 9, v{vL16}")
        e(f"v_lshl_add_u32 v{dst}, v{dst}, 4, v{tmp}")

    def p0(self):
        e = self.e
        PX, PQKV, PPHI, PWO, PG, PU, PD = sPTR, sPTR+2, sPTR+4, sPTR+6, sPTR+10, sPTR+12, sPTR+14
        sSTR, sSO, sDST, sDSTEP, sCS, sGU = sT0, sT1, sT2, sT3, sT4, sT5
        e(f"""
        s_mov_b32 s{sSA}, s{PX}
        s_mov_b32 s{sSA+1}, s{PX+1}
        s_mov_b32 s{sSA+2}, 0x200000
        s_mov_b32 s{sSA+3}, 0x20000
        s_mov_b32 s{sSB}, s{PPHI}
        s_mov_b32 s{sSB+1}, s{PPHI+1}
        s_mov_b32 s{sSB+2}, 16384
        s_mov_b32 s{sSB+3}, 0x20000
        """)
        self.row_addr(vT0, vT1)
        XT = vACC
        e(f"s_add_u32 s{sLD}, s{sOUTO}, 32768")
        e(f"buffer_load_dwordx4 {vr(XT)}, v{vT0}, {sr(sSA)}, s{sOUTO} offen")
        e(f"buffer_load_dwordx4 {vr(XT+4)}, v{vT0}, {sr(sSA)}, s{sLD} offen")
        WP = vACC + 8
        self.lane(vT1)
        e(f"""
        v_bfe_u32 v{vT2}, v{vT1}, 2, 1
        v_lshlrev_b32 v{vT0}, 9, v{vT2}
        v_bfe_u32 v{vTMP}, v{vT1}, 3, 2
        v_lshl_add_u32 v{vT0}, v{vTMP}, 3, v{vT0}
        v_and_b32 v{vTMP}, 3, v{vT1}
        v_lshl_add_u32 v{vT0}, v{vTMP}, 1, v{vT0}
        v_lshrrev_b32 v{vTMP}, 5, v{vT1}
        v_lshl_add_u32 v{vT0}, v{vTMP}, 7, v{vT0}
        s_lshl_b32 s{sLD}, s{sR}, 10
        """)
        for k in range(8):
            e(f"buffer_load_ushort v{WP+k}, v{vT0}, {sr(sSB)}, s{sLD} offen offset:{(8*(k>>2)+(k&3))*32}")
        Lq, Lg, Ld, Lo, Lgo, Lno = [e.label("U") for _ in range(6)]
        def setsrc(pa, pb, size):
            e(f"""
            s_mov_b32 s{sSA}, s{pa}
            s_mov_b32 s{sSA+1}, s{pa+1}
            s_mov_b32 s{sSA+2}, {size}
            s_mov_b32 s{sSB}, s{pb}
            s_mov_b32 s{sSB+1}, s{pb+1}
            s_mov_b32 s{sSB+2}, {size}
            """)
        e(f"""
        s_cmp_ge_u32 s2, 232
        s_cbranch_scc1 {Lno}
        s_cmp_ge_u32 s2, 216
        s_cbranch_scc1 {Lo}
        s_cmp_ge_u32 s2, 160
        s_cbranch_scc1 {Ld}
        s_cmp_ge_u32 s2, 48
        s_cbranch_scc1 {Lg}
        """)
        setsrc(PQKV, PQKV, 512*3072)
        e(f"""
        s_mov_b32 s{sSTR}, 3072
        s_and_b32 s{sCS}, s2, 3
        s_lshr_b32 s{sLD}, s2, 2
        s_lshl_b32 s{sSO}, s{sLD}, 8
        s_lshl_b32 s{sLD}, s{sLD}, 2
        s_add_u32 s{sLD}, s{sLD}, s{sW}
        s_lshr_b32 s{sLD2}, s{sLD}, 4
        s_and_b32 s{sLD}, s{sLD}, 15
        s_mul_i32 s{sLD}, s{sLD}, 3
        s_add_u32 s{sLD2}, s{sLD2}, 2
        s_cmp_ge_u32 s{sLD2}, 3
        s_cselect_b32 s{sDST}, 3, 0
        s_sub_u32 s{sLD2}, s{sLD2}, s{sDST}
        s_add_u32 s{sLD}, s{sLD}, s{sLD2}
        s_mul_i32 s{sDST}, s{sLD}, {TILE}
        s_add_u32 s{sDST}, s{sDST}, {OFF_WQKV}
        s_mov_b32 s{sDSTEP}, 1024
        s_mov_b32 s{sGU}, 0
        s_branch {Lgo}
        {Lg}:
        """)
        setsrc(PG, PU, 512*3584)
        e(f"""
        s_mov_b32 s{sSTR}, 3584
        s_sub_u32 s{sLD}, s2, 48
        s_and_b32 s{sCS}, s{sLD}, 3
        s_lshr_b32 s{sLD}, s{sLD}, 2
        s_lshl_b32 s{sSO}, s{sLD}, 7
        s_lshl_b32 s{sLD}, s{sLD}, 2
        s_add_u32 s{sLD}, s{sLD}, s{sW}
        s_mul_i32 s{sDST}, s{sLD}, {TILE}
        s_add_u32 s{sDST}, s{sDST}, {OFF_WGU}
        s_mov_b32 s{sDSTEP}, 1024
        s_mov_b32 s{sGU}, 1
        s_branch {Lgo}
        """)
        for lab, ptr, size, u0, off, fbs in ((Ld, PD, 1792*1024, 160, OFF_WD, 224*1024), (Lo, PWO, 512*1024, 216, OFF_WO, 65536)):
            e.place(lab)
            setsrc(ptr, ptr, size)
            e(f"""
            s_mov_b32 s{sSTR}, 1024
            s_sub_u32 s{sLD}, s2, {u0}
            s_lshr_b32 s{sCS}, s{sLD}, 2
            s_and_b32 s{sLD}, s{sLD}, 3
            s_lshl_b32 s{sSO}, s{sLD}, 8
            s_lshl_b32 s{sLD}, s{sLD}, 2
            s_add_u32 s{sLD}, s{sLD}, s{sW}
            s_lshr_b32 s{sLD2}, s{sLD}, 1
            s_mul_i32 s{sDST}, s{sLD2}, {fbs}
            s_and_b32 s{sLD}, s{sLD}, 1
            s_lshl_b32 s{sLD}, s{sLD}, 10
            s_add_u32 s{sDST}, s{sDST}, s{sLD}
            s_add_u32 s{sDST}, s{sDST}, {off}
            s_mov_b32 s{sDSTEP}, 2048
            s_mov_b32 s{sGU}, 0
            """)
            if lab == Ld: e(f"s_branch {Lgo}")
        e.place(Lgo)
        STG = 0
        self.lane(vT1)
        e(f"""
        v_lshrrev_b32 v{vT0}, 3, v{vT1}
        v_mul_lo_u32 v{vT0}, v{vT0}, s{sSTR}
        v_and_b32 v{vT2}, 0x70, v{vL16}
        v_add_u32 v{vT0}, v{vT0}, v{vT2}
        s_lshl_b32 s{sLD}, s{sCS}, 2
        s_add_u32 s{sLD}, s{sLD}, s{sW}
        s_lshl_b32 s{sLD}, s{sLD}, 5
        s_mul_i32 s{sLD}, s{sLD}, s{sSTR}
        s_add_u32 s{sLD}, s{sLD}, s{sSO}
        s_cmp_eq_u32 s{sGU}, 1
        s_cselect_b32 s{sLD2}, 0, 128
        s_add_u32 s{sLD2}, s{sLD2}, s{sLD}
        s_lshl_b32 s{sSTR}, s{sSTR}, 3
        s_lshl_b32 s{sSO}, s{sW}, 12
        """)
        for i in range(4):
            e(f"s_add_u32 m0, s{sSO}, {STG + i*1024}")
            e(f"buffer_load_dwordx4 v{vT0}, {sr(sSA)}, s{sLD} offen lds")
            e(f"s_add_u32 m0, s{sSO}, {STG + 16384 + i*1024}")
            e(f"buffer_load_dwordx4 v{vT0}, {sr(sSB)}, s{sLD2} offen lds")
            if i < 3:
                e(f"s_add_u32 s{sLD}, s{sLD}, s{sSTR}")
                e(f"s_add_u32 s{sLD2}, s{sLD2}, s{sSTR}")
        e(f"""
        v_bfe_u32 v{vT0}, v{vT1}, 2, 2
        v_lshrrev_b32 v{vT2}, 5, v{vT1}
        v_lshl_add_u32 v{vT0}, v{vT2}, 2, v{vT0}
        v_lshlrev_b32 v{vT0}, 7, v{vT0}
        v_and_b32 v{vT2}, 3, v{vT1}
        v_lshl_add_u32 v{vT0}, v{vT2}, 3, v{vT0}
        v_bfe_u32 v{vT2}, v{vT1}, 4, 1
        s_cmp_eq_u32 s{sGU}, 1
        s_cselect_b32 s{sLD}, 16384, 32
        v_mul_lo_u32 v{vT2}, v{vT2}, s{sLD}
        v_add_u32 v{vT0}, v{vT0}, v{vT2}
        s_lshr_b32 s{sLD}, s{sW}, 1
        s_lshl_b32 s{sLD}, s{sLD}, 14
        s_and_b32 s{sLD2}, s{sW}, 1
        s_lshl_b32 s{sLD2}, s{sLD2}, 6
        s_add_u32 s{sLD}, s{sLD}, s{sLD2}
        s_lshl_b32 s{sLD2}, s{sW}, 5
        s_cmp_eq_u32 s{sGU}, 1
        s_cselect_b32 s{sLD}, s{sLD2}, s{sLD}
        v_add_u32 v{vT0}, s{sLD}, v{vT0}
        v_mov_b32 v{vWF}, 0x3f803f80
        v_mov_b32 v{vWF+1}, 0x3f803f80
        v_mov_b32 v{vWF+2}, 0x3f803f80
        v_mov_b32 v{vWF+3}, 0x3f803f80
        s_waitcnt vmcnt(0)
        s_barrier
        """)
        F = vSLAB
        for s in range(8):
            e(f"ds_read_b64_tr_b16 {vr(F+4*s,2)}, v{vT0} offset:{STG + s*2048}")
            e(f"ds_read_b64_tr_b16 {vr(F+4*s+2,2)}, v{vT0} offset:{STG + s*2048 + 1024}")
        e(f"""
        s_lshl_b32 s{sLD}, s{sCS}, 3
        s_mul_i32 s{sLD}, s{sLD}, s{sDSTEP}
        s_add_u32 s{sLD}, s{sLD}, s{sDST}
        """)
        CS = vACC + 16
        for s in range(8):
            e(f"buffer_store_dwordx4 {vr(F+4*s)}, v{vL16}, {sr(sWS)}, s{sLD} offen sc1")
            e(f"v_mfma_f32_32x32x16_bf16 {vr(CS,16)}, {vr(vWF)}, {vr(F+4*s)}, {'0' if s == 0 else vr(CS,16)}")
            if s < 7: e(f"s_add_u32 s{sLD}, s{sLD}, s{sDSTEP}")
        e(f"""
        s_cmp_eq_u32 s{sDSTEP}, 1024
        s_cbranch_scc0 {Lno}
        v_cvt_pk_bf16_f32 v{vTMP}, v{CS}, v{CS}
        v_and_b32 v{vTMP+2}, 0xffff0000, v{vTMP}
        v_sub_f32 v{vTMP+2}, v{CS}, v{vTMP+2}
        v_cvt_pk_bf16_f32 v{vTMP+1}, v{vTMP+2}, v{vTMP+2}
        s_lshr_b32 s{sLD}, s{sCS}, 1
        s_lshl_b32 s{sLD}, s{sLD}, 9
        s_and_b32 s{sLD2}, s{sCS}, 1
        s_lshl_b32 s{sLD2}, s{sLD2}, 3
        s_add_u32 s{sLD}, s{sLD}, s{sLD2}
        s_add_u32 s{sLD}, s{sLD}, s{sDST}
        s_add_u32 s{sLD}, s{sLD}, 32768
        s_mov_b32 exec_hi, 0
        buffer_store_dwordx2 {vr(vTMP,2)}, v{vL16}, {sr(sWS)}, s{sLD} offen sc1
        s_mov_b64 exec, -1
        {Lno}:
        s_nop 15
        s_waitcnt vmcnt(0) lgkmcnt(0)
        """)
        self.lane(vT1)
        for k in range(4):
            e(f"v_lshl_or_b32 v{WP+2*k}, v{WP+2*k+1}, 16, v{WP+2*k}")
        e(f"v_and_b32 v{vT2}, 4, v{vT1}")
        e(f"v_cmp_eq_u32 vcc, 0, v{vT2}")
        for k in range(4):
            e(f"v_cndmask_b32 v{vT0}, 0, v{WP+2*k}, vcc")
            e(f"v_accvgpr_write_b32 a{aPHI+k}, v{vT0}")
            e(f"v_cndmask_b32 v{vT0}, v{WP+2*k}, 0, vcc")
            e(f"v_accvgpr_write_b32 a{aPHI+4+k}, v{vT0}")
        e(f"""
        v_and_b32 v{vT0}, 15, v{vT1}
        v_bfe_u32 v{vT2}, v{vT1}, 4, 1
        v_lshlrev_b32 v{vT2}, 2, v{vT2}
        v_sub_u32 v{vT0}, v{vT0}, v{vT2}
        v_mov_b32 v{vT2}, 0x3f803f80
        """)
        for k in range(4):
            q0 = 2 * k if k < 2 else 2 * k + 4
            e(f"""
            v_accvgpr_write_b32 a{aONE+k}, v{vT2}
            v_mov_b32 v{vTMP}, 0
            v_mov_b32 v{vTMP+1}, 0x3f80
            v_cmp_eq_u32 vcc, {q0}, v{vT0}
            v_cndmask_b32 v{vTMP}, v{vTMP}, v{vTMP+1}, vcc
            v_cmp_eq_u32 vcc, {q0+1}, v{vT0}
            v_cndmask_b32 v{vTMP}, v{vTMP}, 1.0, vcc
            v_accvgpr_write_b32 a{aSEL+k}, v{vTMP}
            """)
        for tt in range(2):
            e(f"v_permlane32_swap_b32 v{XT+4*tt}, v{XT+4*tt+2}")
            e(f"v_permlane32_swap_b32 v{XT+4*tt+1}, v{XT+4*tt+3}")
            self.run(self.x_publish(XT + 4*tt, tt, vTMP))
        e(f"""
        v_mov_b32 v{vTMP}, -1
        v_mov_b32 v{vTMP+1}, -1
        v_mov_b32 v{vTMP+2}, -1
        v_mov_b32 v{vTMP+3}, -1
        s_mul_i32 s{sLD}, s{sW}, 544
        s_add_u32 s{sLD}, s{sLD}, s{sKVS}
        s_add_u32 s{sLD2}, s{sLD}, {256*KVREC}
        s_mov_b32 exec_hi, 3
        buffer_store_dwordx4 {vr(vTMP)}, v{vL16}, {sr(sWS)}, s{sLD} offen sc1
        buffer_store_dwordx4 {vr(vTMP)}, v{vL16}, {sr(sWS)}, s{sLD2} offen sc1
        s_mov_b64 exec, 1
        buffer_store_dword v{vZ}, v{vZ}, {sr(sWS)}, s{sMYF} offen sc1
        s_mov_b64 exec, -1
        s_mul_i32 s{sTAG}, s{sEP}, 0x9e3779b1
        s_add_u32 s{sTAG}, s{sTAG}, 0x7f4a7c15
        s_mul_i32 s{sTAG2}, s{sEP}, 0x85ebca6b
        s_add_u32 s{sTAG2}, s{sTAG2}, 0xc2b2ae35
        s_and_b32 s{sTAG2}, s{sTAG2}, 0xfffffff0
        s_or_b32 s{sT0}, s{sTAG2}, s{sXCC}
        v_mov_b32 v{vTMP+4}, s{sTAG}
        v_mov_b32 v{vTMP+5}, s{sT0}
        s_lshl_b32 s{sLD}, s2, 3
        s_add_u32 s{sLD}, s{sLD}, {OFF_G}
        s_waitcnt vmcnt(0)
        s_barrier
        """)
        self.stamp("p0 done")
        Lnf = e.label("NF")
        e(f"""
        s_cmp_eq_u32 s{sW}, 0
        s_cbranch_scc0 {Lnf}
        s_mov_b64 exec, 1
        buffer_store_dwordx2 {vr(vTMP+4,2)}, v{vZ}, {sr(sWS)}, s{sLD} offen sc1
        s_mov_b64 exec, -1
        {Lnf}:
        s_waitcnt vmcnt(0)
        """)
        L = e.label("GP")
        e(f"""
        v_lshrrev_b32 v{vT2}, 1, v{vL16}
        s_lshl_b32 s{sLD}, s{sW}, 9
        s_add_u32 s{sLD}, s{sLD}, {OFF_G}
        s_mov_b32 s{sSPIN}, 0
        {L}:
        s_sleep 8
        buffer_load_dwordx2 {vr(vTMP,2)}, v{vT2}, {sr(sWS)}, s{sLD} offen sc1
        s_add_u32 s{sSPIN}, s{sSPIN}, 1
        s_cmp_gt_u32 s{sSPIN}, 0x80000
        s_cbranch_scc1 L_fail
        s_waitcnt vmcnt(0)
        v_and_b32 v{vTMP+1}, 0xfffffff0, v{vTMP+1}
        v_cmp_ne_u32 vcc, s{sTAG}, v{vTMP}
        v_cmp_ne_u32 {sr(sT0,2)}, s{sTAG2}, v{vTMP+1}
        s_or_b64 {sr(sT0,2)}, vcc, {sr(sT0,2)}
        s_cbranch_scc1 {L}
        s_barrier
        """)
        self.lane(vT1)
        e(f"""
        v_and_b32 v{vT1}, 15, v{vT1}
        v_lshlrev_b32 v{vT1}, 6, v{vT1}
        s_and_b32 s{sLD}, s2, 0x87
        s_lshl_b32 s{sLD}, s{sLD}, 3
        s_add_u32 s{sLD}, s{sLD}, {OFF_G + 4}
        buffer_load_dword v{vT0}, v{vT1}, {sr(sWS)}, s{sLD} offen sc1
        s_or_b32 s{sT2}, s{sTAG2}, s{sXCC}
        v_cmp_ne_u32 vcc, s{sT2}, v{vT0}
        s_cmp_eq_u64 vcc, 0
        s_cselect_b32 s{sWP+2}, {WS_SIZE}, 0
        s_cselect_b32 s{sWI+2}, 0, {WS_SIZE}
        """)
        self.stamp("g sync")

    def x_publish(self, P, tt, T, last=False):
        g = []
        U = T
        S, Q = T + 8, T + 9
        off = tt * 40 * 1024
        g.append([f"s_add_u32 s{sLD2}, s{sXS}, {off}",
                  f"buffer_store_dwordx4 {vr(P)}, v{vL16}, {sr(sWP)}, s{sLD2} offen",
                  f"buffer_store_dwordx4 {vr(P)}, v{vL16}, {sr(sWI)}, s{sLD2} offen sc1"])
        for k in range(4):
            g.append([f"v_lshlrev_b32 v{U+2*k}, 16, v{P+k}"])
            g.append([f"v_and_b32 v{U+2*k+1}, 0xffff0000, v{P+k}"])
        g.append([f"v_add_f32 v{S}, v{U}, v{U+1}"])
        g.append([f"v_mul_f32 v{Q}, v{U}, v{U}"])
        g.append([f"v_fmac_f32 v{Q}, v{U+1}, v{U+1}"])
        for k in range(2, 8):
            g.append([f"v_add_f32 v{S}, v{S}, v{U+k}"])
            g.append([f"v_fmac_f32 v{Q}, v{U+k}, v{U+k}"])
        g.append([f"v_accvgpr_write_b32 a{aRES+8*tt}, v{U}"])
        g.append([f"v_accvgpr_write_b32 a{aRES+8*tt+1}, v{U+1}"])
        g.append([f"v_permlane32_swap_b32 v{S}, v{Q}"])
        g.append([f"v_add_f32 v{S}, v{S}, v{Q}"])
        g.append([f"s_add_u32 s{sLD2}, s{sXST}, {off}",
                  f"buffer_store_dword v{S}, v{vSTO}, {sr(sWP)}, s{sLD2} offen",
                  f"buffer_store_dword v{S}, v{vSTO}, {sr(sWI)}, s{sLD2} offen sc1"])
        for k in range(2, 8):
            g.append([f"v_accvgpr_write_b32 a{aRES+8*tt+k}, v{U+k}"])
        return g

    def stats_groups(self, B):
        g = []
        n = 32
        while n > 1:
            n //= 2
            for i in range(n): g.append([f"v_add_f32 v{B+i}, v{B+i}, v{B+n+i}"])
        g += [[x] for x in f"""
        v_mov_b32 v{B+1}, v{B}
        v_permlane32_swap_b32 v{B}, v{B+1}
        v_mul_f32 v{B}, {hex(f2u(-1.0/512))}, v{B}
        v_mul_f32 v{B+1}, {hex(f2u(1.0/512))}, v{B+1}
        v_fma_f32 v{B+1}, -v{B}, v{B}, v{B+1}
        v_cvt_pk_bf16_f32 v{B+2}, v{B}, v{B}
        v_max_f32 v{B+1}, 0, v{B+1}
        v_and_b32 v{B+3}, 0xffff0000, v{B+2}
        v_add_f32 v{B+1}, {hex(f2u(1e-5))}, v{B+1}
        v_sub_f32 v{B+4}, v{B}, v{B+3}
        v_rsq_f32 v{vC1}, v{B+1}
        v_cvt_pk_bf16_f32 v{vMEAN}, v{B+3}, v{B+4}
        v_cvt_pk_bf16_f32 v{vMEAN+1}, v{B+3}, v{B+4}
        v_cvt_pk_bf16_f32 v{vMEAN+2}, v{B+3}, v{B+4}
        v_cvt_pk_bf16_f32 v{vMEAN+3}, v{B+3}, v{B+4}
        v_mul_f32 v{vC2}, v{B+1}, v{vC1}
        """.strip().split("\n")]
        return g

    def gemm(self, tiles, accs, fill, ksteps=range(33), per_gap=None, start_gap=0):
        e = self.e
        seq = [(s, i) for s in ksteps for i in range(len(tiles))]
        PF = 3
        def rd(j):
            s, i = seq[j]
            e(f"ds_read_b128 {vr(vWF + 4*(j%4))}, v{vSLOT + tiles[i]%4} offset:{s*1024}")
        for j in range(min(PF, len(seq))): rd(j)
        fi = 0
        ngap = len(seq) - start_gap
        for j, (s, i) in enumerate(seq):
            if j + PF < len(seq): rd(j + PF)
            b = vr(vSLAB + 4*s) if s < 32 else vr(vMEAN)
            c = "0" if s == 0 else vr(accs[i], 16)
            e(f"v_mfma_f32_32x32x16_bf16 {vr(accs[i],16)}, {vr(vWF + 4*(j%4))}, {b}, {c}")
            if j >= start_gap:
                want = (len(fill) * (j - start_gap + 1) + ngap - 1) // ngap if per_gap is None else min(len(fill), fi + per_gap)
                while fi < want:
                    self.run([fill[fi]]); fi += 1
        self.run(fill[fi:])

    def softmax_groups(self, P, EP, EN, dst_of):
        g = []
        MX, MN, C = vT0, vT1, vT2
        g.append([f"v_mul_f32 v{C}, {hex(f2u(LOG2E))}, v{vC1}"])
        g.append([f"v_max3_f32 v{MX}, v{P}, v{P+1}, v{P+2}"])
        g.append([f"v_min3_f32 v{MN}, v{P}, v{P+1}, v{P+2}"])
        for k in range(3, 15, 2):
            g.append([f"v_max3_f32 v{MX}, v{MX}, v{P+k}, v{P+k+1}"])
            g.append([f"v_min3_f32 v{MN}, v{MN}, v{P+k}, v{P+k+1}"])
        g.append([f"v_max_f32 v{MX}, v{MX}, v{P+15}"])
        g.append([f"v_min_f32 v{MN}, v{MN}, v{P+15}"])
        g.append([f"v_mul_f32 v{MX}, v{MX}, v{C}"])
        g.append([f"v_mul_f32 v{MN}, v{MN}, v{C}"])
        for k in range(16):
            g.append([f"v_fma_f32 v{EP+k}, v{P+k}, v{C}, -v{MX}"])
            g.append([f"v_fma_f32 v{EN+k}, -v{P+k}, v{C}, v{MN}"])
        for k in range(16):
            g.append([f"v_exp_f32 v{EP+k}, v{EP+k}"])
            g.append([f"v_exp_f32 v{EN+k}, v{EN+k}"])
        g.append([f"v_add_f32 v{MX}, v{EP}, v{EP+1}"])
        g.append([f"v_add_f32 v{MN}, v{EN}, v{EN+1}"])
        for k in range(2, 16):
            g.append([f"v_add_f32 v{MX}, v{MX}, v{EP+k}"])
            g.append([f"v_add_f32 v{MN}, v{MN}, v{EN+k}"])
        g.append([f"v_rcp_f32 v{MX}, v{MX}"])
        g.append([f"v_rcp_f32 v{MN}, v{MN}"])
        for k in range(16):
            g.append([f"v_mul_f32 v{EP+k}, v{EP+k}, v{MX}"])
        for k in range(8):
            g.append([f"v_cvt_pk_bf16_f32 v{dst_of(0,k)}, v{EP+2*k}, v{EP+2*k+1}"])
        for k in range(16):
            g.append([f"v_mul_f32 v{EN+k}, v{EN+k}, v{MN}"])
        for k in range(8):
            g.append([f"v_cvt_pk_bf16_f32 v{dst_of(1,k)}, v{EN+2*k}, v{EN+2*k+1}"])
        return g

    def phi_mfma(self, ACC, P, T):
        e = self.e
        for k in range(8):
            e(f"v_cvt_pk_bf16_f32 v{T+k}, v{ACC+2*k}, v{ACC+2*k+1}")
        e(f"v_mfma_f32_32x32x16_bf16 {vr(P,16)}, {ar(aPHI)}, {vr(T)}, 0")
        e(f"v_mfma_f32_32x32x16_bf16 {vr(P,16)}, {ar(aPHI+4)}, {vr(T+4)}, {vr(P,16)}")

    def slab_groups(self, STAT):
        return self.loads(vSLAB, 32, sXW, sLD) + self.loads(STAT, 8, sXW, sLD, first=32*1024)

    def p1(self, L, xphase):
        e = self.e
        n0 = 10 * L
        AK, AV, AQ, AP = vACC, vACC+16, vACC+32, vACC+48
        if L == 0:
            self.run(self.dma(0) + self.dma(1))
        e("s_waitcnt vmcnt(0)")
        e("s_barrier")
        if xphase: self.poll(vPX, sLF, xphase)
        self.stamp(f"p1.{L} go")
        ld = self.slab_groups(AQ)
        LA = 10
        self.run(ld[:LA])
        fill = []
        for x in ld[LA:]: fill += [x, []]
        self.gemm([n0, n0+1], [AK, AV], fill, ksteps=range(32), per_gap=1)
        tokq = self.run(self.dma(2)) if L == 0 else None
        self.run(self.dma(n0 + 3))
        self.run(self.stats_groups(AQ))
        self.gemm([n0, n0+1], [AK, AV], [], ksteps=[32])
        self.stamp(f"p1.{L} kv gemm")
        self.phi_mfma(AK, AP, vTMP)
        VP = vTMP + 8
        for k in range(16): e(f"v_mul_f32 v{AV+k}, v{AV+k}, v{vC1}")
        for k in range(8): e(f"v_cvt_pk_bf16_f32 v{VP+k}, v{AV+2*k}, v{AV+2*k+1}")
        A1, A2 = vTMP + 16, vTMP + 17
        e(f"""
        v_and_b32 v{A1}, 0x1f0, v{vL16}
        v_lshlrev_b32 v{A1}, 1, v{A1}
        s_lshl_b32 s{sT0}, s{sW}, 10
        s_add_u32 s{sT0}, s{sT0}, {SCR}
        v_add_u32 v{A1}, s{sT0}, v{A1}
        v_lshrrev_b32 v{A2}, 9, v{vL16}
        v_lshl_add_u32 v{vTMP+18}, v{A2}, 4, v{A1}
        v_lshl_add_u32 v{A1}, v{A2}, 13, v{A1}
        """)
        A2 = vTMP + 18
        e(f"ds_write_b128 v{A2}, {vr(VP)} offset:16384")
        e(f"ds_write_b128 v{A2}, {vr(VP+4)} offset:{16384+4096}")
        PK = AQ
        self.run(self.softmax_groups(AP, AK, AV, lambda sg, k: PK + 8*sg + k))
        for sg in range(2):
            e(f"ds_write_b128 v{A1}, {vr(PK+8*sg)} offset:{sg*4096}")
            e(f"ds_write_b128 v{A1}, {vr(PK+8*sg+4)} offset:{sg*4096+16}")
        e(f"""
        v_lshrrev_b32 v{A1}, 1, v{vL16}
        s_lshl_b32 s{sT0}, s{sW}, 12
        s_add_u32 s{sT0}, s{sT0}, {SCR}
        s_lshr_b32 s{sT1}, s{sW}, 1
        s_lshl_b32 s{sT1}, s{sT1}, 12
        s_add_u32 s{sT1}, s{sT1}, {SCR + 16384}
        v_add_u32 v{A2}, s{sT1}, v{A1}
        v_add_u32 v{A1}, s{sT0}, v{A1}
        """)
        e.wait(tokq)
        e("s_waitcnt lgkmcnt(0)")
        e("s_barrier")
        FA, FB = AK, AV
        for s in range(4):
            for hf in range(2):
                e(f"ds_read_b64_tr_b16 {vr(FA+4*s+2*hf,2)}, v{A1} offset:{s*1024+hf*512}")
                e(f"ds_read_b64_tr_b16 {vr(FB+4*s+2*hf,2)}, v{A2} offset:{s*1024+hf*512}")
        KV, ZZ = AP, AP + 4
        for s in range(4):
            e(f"v_mfma_f32_16x16x32_bf16 {vr(KV)}, {vr(FA+4*s)}, {vr(FB+4*s)}, {'0' if s == 0 else vr(KV)}")
            e(f"v_mfma_f32_16x16x32_bf16 {vr(ZZ)}, {vr(FA+4*s)}, {ar(aONE)}, {'0' if s == 0 else vr(ZZ)}")
        G = AP + 8
        e(f"""
        s_lshl_b32 s{sT0}, s{sW}, 9
        v_add_u32 v{A1}, s{sT0}, v{vL16}
        s_lshl_b32 s{sT0}, s{sW}, 5
        s_add_u32 s{sT0}, s{sT0}, 2048
        s_add_u32 s{sT1}, s{sT0}, 16
        v_writelane_b32 v{A1}, s{sT0}, 32
        v_writelane_b32 v{A1}, s{sT1}, 48
        s_add_u32 s{sLD}, s{sKVS}, {L*256*KVREC}
        v_cvt_pk_bf16_f32 v{G}, v{KV}, v{KV+1}
        v_cvt_pk_bf16_f32 v{G+1}, v{KV+2}, v{KV+3}
        v_cvt_pk_bf16_f32 v{G+2}, v{ZZ}, v{ZZ+1}
        v_cvt_pk_bf16_f32 v{G+3}, v{ZZ+2}, v{ZZ+3}
        v_permlane32_swap_b32 v{G}, v{G+2}
        v_permlane32_swap_b32 v{G+1}, v{G+3}
        v_min_u32 v{G}, -2, v{G}
        v_min_u32 v{G+3}, -2, v{G+3}
        s_mov_b32 exec_hi, 0x00010001
        buffer_store_dwordx4 {vr(G)}, v{A1}, {sr(sWS)}, s{sLD} offen sc1
        s_mov_b64 exec, -1
        """)
        self.stamp(f"p1.{L} kv pub")
        self.gemm([n0+2], [AQ], self.dma(n0+4) + self.dma(n0+5))
        WO = vSLAB
        self.run(self.loads(WO, 8, sWO_, sLD, vaddr=vLX, flags="", step=2048))
        e(f"v_xor_b32 v{vTMP+20}, 0x400, v{vLX}")
        self.run(self.loads(WO + 32, 8, sWO_, sLD, vaddr=vTMP+20, flags="", step=2048))
        self.phi_mfma(AQ, AP, vTMP)
        PQ = AQ
        def pq_dst(sg, k):
            g = (k >> 1) & 1
            return PQ + 8*sg + 4*g + (k & 1) + 2*(k >> 2)
        self.run(self.softmax_groups(AP, AK, AV, pq_dst))
        self.stamp(f"p1.{L} q done")
        KP = vSLAB + 64
        ZP = KP + 32
        OA = AK
        for k in range(32): e(f"v_mov_b32 v{OA+k}, 0")
        e(f"""
        v_lshrrev_b32 v{A1}, 9, v{vL16}
        v_mul_u32_u24 v{A1}, {KVREC}, v{A1}
        v_and_b32 v{A2}, 0x1f0, v{vL16}
        v_add_u32 v{A1}, v{A1}, v{A2}
        s_lshl_b32 s{sT0}, s{sW}, 9
        v_add_u32 v{A1}, s{sT0}, v{A1}
        v_bfe_u32 v{A2}, v{vL16}, 4, 4
        v_mul_u32_u24 v{A2}, {KVREC}, v{A2}
        v_bfe_u32 v{vT0}, v{vL16}, 8, 1
        v_lshl_add_u32 v{A2}, v{vT0}, 4, v{A2}
        s_lshl_b32 s{sT0}, s{sW}, 5
        s_add_u32 s{sT0}, s{sT0}, 2048
        v_add_u32 v{A2}, s{sT0}, v{A2}
        s_mov_b32 s{sSPIN}, 0
        """)
        Lk = e.label("KV")
        e.place(Lk)
        for i in range(8):
            e(f"s_add_u32 s{sLD}, s{sKVL}, {L*256*KVREC + 2*i*KVREC}")
            e(f"buffer_load_dwordx4 {vr(KP+4*i)}, v{A1}, {sr(sWS)}, s{sLD} offen sc1")
        e(f"s_add_u32 s{sLD}, s{sKVL}, {L*256*KVREC}")
        e(f"buffer_load_dwordx4 {vr(ZP)}, v{A2}, {sr(sWS)}, s{sLD} offen sc1")
        e(f"s_add_u32 s{sSPIN}, s{sSPIN}, 1")
        e(f"s_cmp_gt_u32 s{sSPIN}, 0x80000")
        e("s_cbranch_scc1 L_fail")
        e("s_waitcnt vmcnt(0)")
        e(f"v_max_u32 v{vT0}, v{ZP}, v{ZP+3}")
        for i in range(8):
            e(f"v_max3_u32 v{vT0}, v{vT0}, v{KP+4*i}, v{KP+4*i+3}")
        e(f"v_cmp_eq_u32 vcc, -1, v{vT0}")
        e(f"s_cbranch_vccnz {Lk}")
        self.stamp(f"p1.{L} kv got")
        for i in range(8):
            e(f"v_mfma_f32_16x16x32_bf16 {vr(KV)}, {ar(aSEL)}, {vr(KP+4*i)}, {'0' if i == 0 else vr(KV)}")
        KVB = SCR + 24576
        e(f"""
        v_and_b32 v{A2}, 0x1f0, v{vL16}
        s_lshl_b32 s{sT0}, s{sW}, 9
        s_add_u32 s{sT0}, s{sT0}, {KVB}
        v_add_u32 v{A2}, s{sT0}, v{A2}
        s_mov_b32 exec_hi, 0
        ds_write_b128 v{A2}, {vr(ZP)} offset:2048
        s_mov_b64 exec, -1
        v_and_b32 v{A1}, 0x130, v{vL16}
        v_bfe_u32 v{vT0}, v{vL16}, 6, 1
        v_lshl_add_u32 v{A1}, v{vT0}, 7, v{A1}
        v_bfe_u32 v{vT0}, v{vL16}, 7, 1
        v_lshl_add_u32 v{A1}, v{vT0}, 6, v{A1}
        v_lshrrev_b32 v{vT0}, 9, v{vL16}
        v_lshl_add_u32 v{A1}, v{vT0}, 3, v{A1}
        v_add_u32 v{A1}, s{sT0}, v{A1}
        v_cvt_pk_bf16_f32 v{G}, v{KV}, v{KV+1}
        v_cvt_pk_bf16_f32 v{G+1}, v{KV+2}, v{KV+3}
        ds_write_b64 v{A1}, {vr(G,2)}
        v_and_b32 v{A2}, 0xf0, v{vL16}
        v_lshl_add_u32 v{A2}, v{vT0}, 10, v{A2}
        v_add_u32 v{A2}, {KVB}, v{A2}
        s_waitcnt lgkmcnt(0)
        s_barrier
        s_mov_b32 exec_lo, 0x0000ffff
        s_mov_b32 exec_hi, 0xffff0000
        """)
        for s in range(4):
            e(f"ds_read_b128 {vr(OA+4*s)}, v{A2} offset:{s*256}")
            e(f"ds_read_b128 {vr(OA+16+4*s)}, v{A2} offset:{2048+s*256}")
        e("s_mov_b64 exec, -1")
        NUM, DEN = AP, KP
        for s in range(4):
            e(f"v_mfma_f32_32x32x16_bf16 {vr(DEN,16)}, {vr(OA+16+4*s)}, {vr(PQ+4*s)}, {'0' if s == 0 else vr(DEN,16)}")
        for s in range(4):
            e(f"v_mfma_f32_32x32x16_bf16 {vr(NUM,16)}, {vr(OA+4*s)}, {vr(PQ+4*s)}, {'0' if s == 0 else vr(NUM,16)}")
        for n in (4, 2, 1):
            for hd in range(2):
                for i in range(n): e(f"v_add_f32 v{DEN+8*hd+i}, v{DEN+8*hd+i}, v{DEN+8*hd+n+i}")
        e(f"""
        v_mov_b32 v{DEN+1}, v{DEN}
        v_mov_b32 v{DEN+9}, v{DEN+8}
        v_permlane32_swap_b32 v{DEN}, v{DEN+1}
        v_permlane32_swap_b32 v{DEN+8}, v{DEN+9}
        v_add_f32 v{DEN}, v{DEN}, v{DEN+1}
        v_add_f32 v{DEN+8}, v{DEN+8}, v{DEN+9}
        v_add_f32 v{DEN}, {hex(f2u(1e-6))}, v{DEN}
        v_add_f32 v{DEN+8}, {hex(f2u(1e-6))}, v{DEN+8}
        v_rcp_f32 v{DEN}, v{DEN}
        v_rcp_f32 v{DEN+8}, v{DEN+8}
        """)
        for hd in range(2):
            for k in range(8): e(f"v_mul_f32 v{NUM+8*hd+k}, v{NUM+8*hd+k}, v{DEN+8*hd}")
            for k in range(4): e(f"v_cvt_pk_bf16_f32 v{vTMP+4*hd+k}, v{NUM+8*hd+2*k}, v{NUM+8*hd+2*k+1}")
            self.store2("buffer_store_dwordx4", vr(vTMP+4*hd), vL16, sOS, hd*1024)
        ph = self.signal()
        self.stamp(f"p1.{L} o pub")
        return ph

    def splitk(self, name, nk, wreg, sbase, tgstride, phase, ABUF, ring, pre, last=False):
        e = self.e
        acc = [vACC, vACC+16, vACC+32, vACC+48]
        AW, AR = vMEAN, vMEAN + 3
        for tt in range(2):
            for k in range(8): e(f"v_accvgpr_read_b32 v{acc[2*tt]+k}, a{aRES+8*tt+k}")
            for k in range(8, 16): e(f"v_mov_b32 v{acc[2*tt]+k}, 0")
        for q in range(1, 4):
            e(f"s_xor_b32 s{sT0}, s{sW}, {q}")
            e(f"s_mul_i32 s{sT0}, s{sT0}, 6144")
            e(f"s_add_u32 s{sT0}, s{sT0}, {SCR + (q-1)*2048}")
            e(f"v_add_u32 v{AW+q-1}, s{sT0}, v{vL16}")
        e(f"s_mul_i32 s{sT0}, s{sW}, 6144")
        e(f"s_add_u32 s{sT0}, s{sT0}, {SCR}")
        e(f"v_add_u32 v{AR}, s{sT0}, v{vL16}")
        if last: self.row_addr(vC1, vC2)
        self.run(pre)
        self.poll(vPO, sLF, phase)
        self.stamp(f"{name} go")
        ld = []
        for tt in range(2):
            for i in range(nk):
                x = []
                if i % 4 == 0: x.append(f"s_add_u32 s{sLD}, s{sbase}, {tt*tgstride + i*1024}")
                r = ABUF + 4 * ((tt*nk + i) % ring)
                x.append(f"buffer_load_dwordx4 {vr(r)}, v{vL16}, {sr(sWS)}, s{sLD} offen offset:{(i%4)*1024} sc1")
                ld.append(x)
        LA = min(10, ring - 1)
        self.run(ld[:LA])
        RB = vTMP + 4
        def red_write(tt):
            return [[f"ds_write_b128 v{AW+q-1}, {vr(acc[2*tt] + 8*q + 4*hf)} offset:{hf*1024}"] for q in range(1, 4) for hf in range(2)]
        def red_read():
            return [[f"ds_read_b128 {vr(RB + 4*j)}, v{AR} offset:{j*1024}"] for j in range(6)]
        def red_fin(tt):
            g = []
            O = acc[2*tt]
            for q in range(3):
                for k in range(8): g.append([f"v_add_f32 v{O+k}, v{O+k}, v{RB+8*q+k}"])
            for k in range(4): g.append([f"v_cvt_pk_bf16_f32 v{vTMP+k}, v{O+2*k}, v{O+2*k+1}"])
            if last:
                g.append([f"v_permlane32_swap_b32 v{vTMP}, v{vTMP+2}"])
                g.append([f"v_permlane32_swap_b32 v{vTMP+1}, v{vTMP+3}"])
                g.append([f"s_add_u32 s{sLD2}, s{sOUTO}, {tt*32768}",
                          f"buffer_store_dwordx4 {vr(vTMP)}, v{vC1}, {sr(sOUT)}, s{sLD2} offen"])
            else:
                g += self.x_publish(vTMP, tt, O + 8)
            return g
        BAR = [["s_waitcnt lgkmcnt(0)", "s_barrier"]]
        side = []
        for tt in range(2):
            if tt == 1: side = [[], [], []] + red_write(0) + BAR + red_read() + BAR + red_fin(0)
            si = 0
            for i in range(nk):
                j = tt * nk + i
                if j + LA < len(ld): self.run([ld[j + LA]])
                a_ = vr(ABUF + 4 * (j % ring))
                for ft in range(2):
                    c = "0" if (i == 0 and ft == 1) else vr(acc[2*tt+ft], 16)
                    e(f"v_mfma_f32_32x32x16_bf16 {vr(acc[2*tt+ft],16)}, {wreg(i, ft)}, {a_}, {c}")
                    want = min(len(side), si + (3 if si >= 17 else 1))
                    while si < want:
                        self.run([side[si]]); si += 1
            self.run(side[si:])
        self.stamp(f"{name} gemm")
        self.run(red_write(1) + BAR + red_read() + red_fin(1))
        if last: return None
        ph = self.signal()
        self.stamp(f"{name} pub")
        return ph

    def p2(self, L, phase):
        return self.splitk(f"p2.{L}", 8, lambda ks, ft: vr(vSLAB + 32*ft + 4*ks), sOL, 32*1024, phase,
                           vSLAB + 64, 16, self.dma(10*L + 6))

    def p4(self, L, phase):
        return self.splitk(f"p4.{L}", 28, lambda ks, ft: ar(aWD + 112*ft + 4*ks), sHL, 112*1024, phase,
                           vSLAB, 32, [], last=(L == 1))

    def glu_groups(self, ACC, tau):
        g = []
        T = vTMP + 4
        for k in range(8): g.append([f"v_mul_f32 v{T+k}, v{ACC+k}, v{vC1}"])
        for k in range(8): g.append([f"v_exp_f32 v{T+k}, v{T+k}"])
        for k in range(8): g.append([f"v_fma_f32 v{T+k}, v{T+k}, v{vC2}, v{vC2}"])
        for k in range(8): g.append([f"v_rcp_f32 v{T+k}, v{T+k}"])
        for k in range(8): g.append([f"v_mul_f32 v{T+k}, v{T+k}, v{ACC+8+k}"])
        for k in range(4): g.append([f"v_cvt_pk_bf16_f32 v{vTMP+k}, v{T+2*k}, v{T+2*k+1}"])
        g.append([f"s_add_u32 s{sLD2}, s{sHS}, {tau*1024}",
                  f"buffer_store_dwordx4 {vr(vTMP)}, v{vL16}, {sr(sWS)}, s{sLD2} offen sc1"])
        return g

    @staticmethod
    def mix(a, b):
        out, i, j = [], 0, 0
        while i < len(a) or j < len(b):
            if j >= len(b) or (i < len(a) and i * len(b) <= j * len(a)):
                out.append(a[i]); i += 1
            else:
                out.append(b[j]); j += 1
        return out

    def p3(self, L, xphase):
        e = self.e
        n0 = 10 * L + 3
        acc = [vACC, vACC+16, vACC+32]
        e("s_waitcnt vmcnt(0)")
        e("s_barrier")
        self.poll(vPX, sLF, xphase)
        self.stamp(f"p3.{L} go")
        ld = self.slab_groups(vACC + 32)
        LA = 10
        self.run(ld[:LA])
        fill = []
        for x in ld[LA:]: fill += [x, []]
        self.gemm([n0, n0+1], acc[:2], fill, ksteps=range(32), per_gap=1)
        self.run(self.stats_groups(vACC + 32))
        e(f"v_mul_f32 v{vC1}, {hex(f2u(-LOG2E))}, v{vC1}")
        self.gemm([n0, n0+1], acc[:2], [], ksteps=[32])
        self.stamp(f"p3.{L} pair")
        wd = []
        if L == 0:
            e(f"v_xor_b32 v{vTMP+20}, 0x400, v{vLX}")
            wd = (self.loads(aWD, 28, sWD_, sLD, vaddr=vLX, flags="", step=2048, agpr=True) +
                  self.loads(aWD + 112, 28, sWD_, sLD, vaddr=vTMP+20, flags="", step=2048, agpr=True))
        landed = {}
        for tau in range(2, 7):
            if n0 + tau in landed: e.wait(landed[n0 + tau])
            e("s_barrier")
            new = [n0+4, n0+5] if tau == 2 else [n0 + tau + 3]
            epi = (self.glu_groups(acc[0], 0) + self.glu_groups(acc[1], 1)) if tau == 2 else self.glu_groups(acc[(tau-1) % 3], tau - 1)
            mem = []
            marks = {}
            for n in new:
                d = self.dma(n)
                if d:
                    mem += d; marks[id(d[-1])] = n
            k0, k1 = (tau - 2) * 12, (tau - 1) * 12
            k0 -= k0 % 2; k1 -= k1 % 2
            mem = mem + wd[k0:k1]
            fill = self.mix(epi, mem)
            orig_run = self.run
            def run2(groups):
                tok = None
                for g in groups:
                    t = orig_run([g])
                    if id(g) in marks: landed[marks[id(g)]] = t
                    tok = t or tok
                return tok
            self.run = run2
            self.gemm([n0 + tau], [acc[tau % 3]], fill, start_gap=2)
            self.run = orig_run
        self.stamp(f"p3.{L} gemm")
        self.run(self.glu_groups(acc[6 % 3], 6))
        ph = self.signal()
        self.stamp(f"p3.{L} pub")
        return ph

    def build(self):
        e = self.e
        self.prologue()
        self.p0()
        ph = 0
        steps = 0
        for L in range(2):
            for f in (self.p1, self.p2, self.p3, self.p4):
                if self.stop is not None and steps >= self.stop: break
                ph = f(L, ph)
                steps += 1
        self.stamp("end")
        Ls = e.label("SK")
        e(f"""
        s_or_b32 s{sT0}, s2, s{sW}
        s_cmp_eq_u32 s{sT0}, 0
        s_cbranch_scc0 {Ls}
        s_add_u32 s{sT0}, s{sEP}, 1
        v_mov_b32 v{vT0}, s{sT0}
        s_mov_b64 exec, 1
        buffer_store_dword v{vT0}, v{vZ}, {sr(sWS)}, 0 offen
        s_mov_b64 exec, -1
        {Ls}:
        """)
        e.place("L_fail")
        if self.dbg:
            e(f"""
            s_mov_b64 exec, -1
            s_lshl_b32 s{sT0}, s2, 2
            s_add_u32 s{sT0}, s{sT0}, s{sW}
            s_lshl_b32 s{sT0}, s{sT0}, 8
            s_add_u32 s{sT0}, s{sT0}, {OFF_DBG}
            v_lshrrev_b32 v{vT0}, 2, v{vL16}
            buffer_store_dword v{vSTAMP}, v{vT0}, {sr(sWS)}, s{sT0} offen
            """)
        e.place("L_end")
        e("s_endpgm")
        return e.text()

HEADER = open(os.path.join(os.path.dirname(os.path.abspath(__file__)), "header.txt")).read()

def generate(path, dbg=False, stop=None):
    k = K(dbg=dbg, stop=stop)
    body = k.build()
    open(path, "w").write(wrap(body, 256, 256, LDS_SIZE, header=HEADER))
    return k

if __name__ == "__main__":
    import argparse
    ap = argparse.ArgumentParser()
    ap.add_argument("out"); ap.add_argument("--dbg", action="store_true"); ap.add_argument("--stop", type=int)
    a = ap.parse_args()
    k = generate(a.out, a.dbg, a.stop)
    print("nops", k.e.nops, k.e.count)
    if a.dbg: open(a.out + ".stamps", "w").write("\n".join(k.stamp_names))
```

```python
import sys, os
sys.path.insert(0, os.path.dirname(os.path.abspath(__file__)))
from emit import *

OFF_EPOCH = 0
OFF_G     = 0x1000
OFF_LF    = 0x2000
OFF_KV    = 0x10000
KVREC     = 2176
TILE      = 33792
OFF_WQKV  = 0x200000
OFF_WGU   = 0x400000
OFF_WD    = 0x800000
OFF_WO    = 0xA00000
OFF_X     = 0xB00000
OFF_O     = 0xE00000
OFF_H     = 0x1000000
OFF_DBG   = 0x2000000
WS_SIZE   = 0x10000000
SCR       = 4 * TILE
LDS_SIZE  = 163840

sWS, sWP, sWI, sSA, sSB = 8, 12, 16, 20, 24
sW, sR, sC, sTH, sFB = 28, 29, 30, 31, 32
sEP, sTAG, sTAG2, sXCC = 33, 34, 35, 36
sLF, sMYF = 37, 38
sXW, sXS = 39, 40
sXST = 41
sOS, sOL = 42, 43
sHS, sHL = 44, 45
sWQ, sWG, sWD_, sWO_ = 46, 47, 48, 49
sKVS, sKVL = 50, 51
sM0W = 52
sEXQ = 54
sT0, sT1, sT2, sT3, sT4, sT5 = 56, 57, 58, 59, 60, 61
sSPIN = 62
sDMA, sLD, sLD2 = 63, 64, 65
sOUT = 68
sOUTO = 72
sTS = 74
sT0S = 76
sPTR = 80

vL16, vSLOT, vLX, vPX, vPO, vZ, vSTO = 1, 2, 6, 7, 8, 9, 10
vC1, vC2, vT0, vT1, vT2 = 11, 12, 13, 14, 15
vMEAN, vWF, vTMP, vACC, vSLAB = 16, 20, 36, 64, 128
vSTAMP = 0
aWD, aRES, aPHI, aSEL, aONE = 0, 224, 240, 248, 252

LOG2E = 1.4426950408889634
import struct
def f2u(x): return struct.unpack("<I", struct.pack("<f", x))[0]
def vr(b, n=4): return f"v[{b}:{b+n-1}]"
def ar(b, n=4): return f"a[{b}:{b+n-1}]"
def sr(b, n=4): return f"s[{b}:{b+n-1}]"

class K:
    def __init__(self, dbg=False, stop=None):
        self.e = E()
        self.dbg = dbg
        self.stop = stop
        self.nstamp = 0
        self.stamp_names = []
        self.phase = 0

    def stamp(self, name):
        if not self.dbg: return
        if self.dbg == 2 and not (name.endswith("pub") or name in ("p0 done", "g sync", "end", "p1.0 go")): return
        e = self.e
        e(f"s_memtime {sr(sTS,2)}")
        e("s_waitcnt lgkmcnt(0)")
        e(f"s_sub_u32 s{sTS}, s{sTS}, s{sT0S}")
        e(f"v_writelane_b32 v{vSTAMP}, s{sTS}, {self.nstamp}")
        self.stamp_names.append(name); self.nstamp += 1

    def poll(self, vaddr, sbase, phase):
        e = self.e
        L = e.label("POLL")
        e(f"s_mov_b32 s{sSPIN}, 0")
        e.place(L)
        e(f"buffer_load_dword v{vT0}, v{vaddr}, {sr(sWS)}, s{sbase} offen sc1")
        e(f"s_add_u32 s{sSPIN}, s{sSPIN}, 1")
        e(f"s_cmp_gt_u32 s{sSPIN}, 0x200000")
        e("s_cbranch_scc1 L_fail")
        e("s_waitcnt vmcnt(0)")
        e(f"v_cmp_gt_u32 vcc, {phase}, v{vT0}")
        e(f"s_cbranch_vccnz {L}")

    def store2(self, op, data, vaddr, soff, imm=0):
        e = self.e
        o = f" offset:{imm}" if imm else ""
        e(f"{op} {data}, v{vaddr}, {sr(sWP)}, s{soff} offen{o}")
        return e(f"{op} {data}, v{vaddr}, {sr(sWI)}, s{soff} offen{o} sc1")

    def signal(self):
        e = self.e
        self.phase += 1
        e(f"v_mov_b32 v{vT0}, {self.phase}")
        e("s_waitcnt vmcnt(0)")
        e("s_mov_b64 exec, 1")
        self.store2("buffer_store_dword", f"v{vT0}", vZ, sMYF)
        e("s_mov_b64 exec, -1")
        return self.phase

    def dma_tile(self, n, sbase, toff):
        slot = (n % 4) * TILE
        g = []
        for i in range(8):
            x = []
            if i % 4 == 0:
                x.append(f"s_add_u32 m0, s{sM0W}, {slot + i*1024}")
                x.append(f"s_add_u32 s{sDMA}, s{sbase}, {toff + i*1024}")
            x.append(f"buffer_load_dwordx4 v{vL16}, {sr(sWS)}, s{sDMA} offen offset:{(i%4)*1024} lds")
            g.append(x)
        g.append([f"s_mov_b32 m0, {slot + 32768}",
                  f"s_sub_u32 s{sDMA}, s{sbase}, s{sM0W}",
                  f"s_add_u32 s{sDMA}, s{sDMA}, {toff + 32768}",
                  f"s_mov_b64 exec, {sr(sEXQ,2)}",
                  f"buffer_load_dwordx4 v{vL16}, {sr(sWS)}, s{sDMA} offen lds",
                  f"s_mov_b64 exec, -1"])
        return g

    def tile_src(self, n):
        i = n % 10
        return (sWQ, i * TILE) if i < 3 else (sWG, (i - 3) * TILE)

    def dma(self, n):
        if n >= 20: return []
        return self.dma_tile(n, *self.tile_src(n))

    def run(self, groups):
        tok = None
        for g in groups:
            for x in g:
                t = self.e(x)
                if t and t[0] == "vm": tok = t
        return tok

    def loads(self, dst, n, sbase, sreg, vaddr=vL16, flags="sc1", step=1024, agpr=False, first=0, ring=None):
        g = []
        per = 4096 // step
        for i in range(n):
            x = []
            if i % per == 0: x.append(f"s_add_u32 s{sreg}, s{sbase}, {first + i*step}")
            r = dst + 4 * (i if ring is None else i % ring)
            x.append(f"buffer_load_dwordx4 {ar(r) if agpr else vr(r)}, v{vaddr}, {sr(sWS)}, s{sreg} offen offset:{(i%per)*step} {flags}".rstrip())
            g.append(x)
        return g

    def prologue(self):
        e = self.e
        e(f"""
        s_cmp_ge_u32 s2, 256
        s_cbranch_scc1 L_end
        """)
        if self.dbg: e(f"s_memtime {sr(sT0S,2)}")
        if self.dbg: e(f"s_memrealtime s[78:79]")
        e(f"""
        s_load_dwordx16 s[{sPTR}:{sPTR+15}], s[0:1], 0
        s_load_dwordx4 s[{sPTR+16}:{sPTR+19}], s[0:1], 64
        s_load_dwordx2 s[{sPTR+20}:{sPTR+21}], s[0:1], 80
        v_lshrrev_b32 v{vT0}, 6, v0
        v_and_b32 v{vT1}, 63, v0
        v_readfirstlane_b32 s{sW}, v{vT0}
        v_lshlrev_b32 v{vL16}, 4, v{vT1}
        s_getreg_b32 s{sXCC}, hwreg(HW_REG_XCC_ID, 0, 4)
        s_and_b32 s{sC}, s2, 7
        s_lshl_b32 s{sC}, s{sC}, 1
        s_lshr_b32 s{sT0}, s2, 7
        s_add_u32 s{sC}, s{sC}, s{sT0}
        s_lshr_b32 s{sR}, s2, 3
        s_and_b32 s{sR}, s{sR}, 15
        s_lshr_b32 s{sTH}, s{sR}, 3
        s_and_b32 s{sFB}, s{sR}, 7
        s_waitcnt lgkmcnt(0)
        s_load_dword s{sEP}, s[{sPTR+20}:{sPTR+21}], {OFF_EPOCH}
        """)
        for srd in (sWS, sWP, sWI):
            e(f"""
            s_mov_b32 s{srd}, s{sPTR+20}
            s_mov_b32 s{srd+1}, s{sPTR+21}
            s_mov_b32 s{srd+2}, {WS_SIZE if srd != sWP else 0}
            s_mov_b32 s{srd+3}, 0x20000
            """)
        e(f"""
        s_mov_b32 s{sOUT}, s{sPTR+16}
        s_mov_b32 s{sOUT+1}, s{sPTR+17}
        s_mov_b32 s{sOUT+2}, 0x200000
        s_mov_b32 s{sOUT+3}, 0x20000
        v_mov_b32 v{vZ}, 0
        """)
        if self.dbg: e(f"v_mov_b32 v{vSTAMP}, 0")
        for i in range(4):
            e(f"v_add_u32 v{vSLOT+i}, {i*TILE}, v{vL16}")
        e(f"""
        s_lshl_b32 s{sM0W}, s{sW}, 13
        s_lshl_b32 s{sT0}, s{sW}, 4
        s_mov_b64 s[{sEXQ}:{sEXQ+1}], 0xffff
        s_lshl_b64 s[{sEXQ}:{sEXQ+1}], s[{sEXQ}:{sEXQ+1}], s{sT0}
        s_and_b32 s{sT0}, s{sW}, 1
        s_lshl_b32 s{sT0}, s{sT0}, 8
        v_xor_b32 v{vLX}, s{sT0}, v{vL16}
        s_lshl_b32 s{sT0}, s{sW}, 2
        v_add_u32 v{vSTO}, s{sT0}, v{vL16}
        s_lshl_b32 s{sLF}, s{sC}, 9
        s_add_u32 s{sLF}, s{sLF}, {OFF_LF}
        s_lshl_b32 s{sT0}, s{sW}, 7
        s_lshl_b32 s{sT1}, s{sR}, 2
        s_add_u32 s{sMYF}, s{sLF}, s{sT0}
        s_add_u32 s{sMYF}, s{sMYF}, s{sT1}
        v_bfe_u32 v{vT0}, v{vT1}, 3, 2
        v_lshlrev_b32 v{vT0}, 7, v{vT0}
        v_and_b32 v{vT2}, 7, v{vT1}
        v_lshl_add_u32 v{vPX}, v{vT2}, 2, v{vT0}
        s_lshr_b32 s{sT0}, s{sW}, 1
        s_lshl_b32 s{sT0}, s{sT0}, 5
        v_add_u32 v{vPX}, s{sT0}, v{vPX}
        v_bfe_u32 v{vT0}, v{vT1}, 2, 1
        v_lshlrev_b32 v{vT0}, 7, v{vT0}
        v_and_b32 v{vT2}, 3, v{vT1}
        v_lshl_add_u32 v{vPO}, v{vT2}, 2, v{vT0}
        s_lshl_b32 s{sT0}, s{sTH}, 8
        s_lshl_b32 s{sT1}, s{sW}, 4
        s_add_u32 s{sT0}, s{sT0}, s{sT1}
        v_add_u32 v{vPO}, s{sT0}, v{vPO}
        ; X
        s_mul_i32 s{sT0}, s{sC}, {160*1024}
        s_add_u32 s{sT0}, s{sT0}, {OFF_X}
        s_mul_i32 s{sT1}, s{sW}, {40*1024}
        s_add_u32 s{sXW}, s{sT0}, s{sT1}
        s_mul_i32 s{sT1}, s{sTH}, {80*1024}
        s_add_u32 s{sT0}, s{sT0}, s{sT1}
        s_lshl_b32 s{sT1}, s{sFB}, 2
        s_add_u32 s{sT1}, s{sT1}, s{sW}
        s_lshl_b32 s{sT1}, s{sT1}, 10
        s_add_u32 s{sXS}, s{sT0}, s{sT1}
        s_lshl_b32 s{sT1}, s{sFB}, 10
        s_add_u32 s{sXST}, s{sT0}, s{sT1}
        s_add_u32 s{sXST}, s{sXST}, {32*1024}
        ; O
        s_lshl_b32 s{sT0}, s{sC}, 17
        s_add_u32 s{sT0}, s{sT0}, {OFF_O}
        s_lshl_b32 s{sT1}, s{sW}, 15
        s_lshl_b32 s{sT2}, s{sR}, 11
        s_add_u32 s{sOS}, s{sT0}, s{sT1}
        s_add_u32 s{sOS}, s{sOS}, s{sT2}
        s_lshl_b32 s{sT1}, s{sTH}, 16
        s_add_u32 s{sOL}, s{sT0}, s{sT1}
        s_add_u32 s{sOL}, s{sOL}, s{sM0W}
        ; H
        s_mul_i32 s{sT0}, s{sC}, {448*1024}
        s_add_u32 s{sT0}, s{sT0}, {OFF_H}
        s_mul_i32 s{sT1}, s{sW}, {112*1024}
        s_mul_i32 s{sT2}, s{sR}, {7*1024}
        s_add_u32 s{sHS}, s{sT0}, s{sT1}
        s_add_u32 s{sHS}, s{sHS}, s{sT2}
        s_mul_i32 s{sT1}, s{sTH}, {224*1024}
        s_mul_i32 s{sT2}, s{sW}, {28*1024}
        s_add_u32 s{sHL}, s{sT0}, s{sT1}
        s_add_u32 s{sHL}, s{sHL}, s{sT2}
        ; weights
        s_mul_i32 s{sWQ}, s{sR}, {3*TILE}
        s_add_u32 s{sWQ}, s{sWQ}, {OFF_WQKV}
        s_add_u32 s{sWQ}, s{sWQ}, s{sM0W}
        s_mul_i32 s{sWG}, s{sR}, {7*TILE}
        s_add_u32 s{sWG}, s{sWG}, {OFF_WGU}
        s_add_u32 s{sWG}, s{sWG}, s{sM0W}
        s_mul_i32 s{sWD_}, s{sFB}, {224*1024}
        s_mul_i32 s{sT0}, s{sW}, {56*1024}
        s_add_u32 s{sWD_}, s{sWD_}, s{sT0}
        s_add_u32 s{sWD_}, s{sWD_}, {OFF_WD}
        s_lshl_b32 s{sWO_}, s{sFB}, 16
        s_lshl_b32 s{sT0}, s{sW}, 14
        s_add_u32 s{sWO_}, s{sWO_}, s{sT0}
        s_add_u32 s{sWO_}, s{sWO_}, {OFF_WO}
        s_lshr_b32 s{sT0}, s{sW}, 1
        s_lshl_b32 s{sT0}, s{sT0}, 10
        v_add_u32 v{vLX}, s{sT0}, v{vLX}
        ; kv
        s_mul_i32 s{sKVL}, s{sR}, {16*KVREC}
        s_add_u32 s{sKVL}, s{sKVL}, {OFF_KV}
        s_mul_i32 s{sT0}, s{sC}, {KVREC}
        s_add_u32 s{sKVS}, s{sKVL}, s{sT0}
        s_lshl_b32 s{sOUTO}, s{sC}, 1
        s_add_u32 s{sOUTO}, s{sOUTO}, s{sTH}
        s_lshl_b32 s{sOUTO}, s{sOUTO}, 16
        s_lshl_b32 s{sT0}, s{sFB}, 7
        s_lshl_b32 s{sT1}, s{sW}, 5
        s_add_u32 s{sOUTO}, s{sOUTO}, s{sT0}
        s_add_u32 s{sOUTO}, s{sOUTO}, s{sT1}
        """)

    def lane(self, dst):
        self.e(f"v_lshrrev_b32 v{dst}, 4, v{vL16}")

    def row_addr(self, dst, tmp):
        e = self.e
        e(f"v_and_b32 v{tmp}, 0x1f0, v{vL16}")
        e(f"v_lshlrev_b32 v{tmp}, 6, v{tmp}")
        e(f"v_lshrrev_b32 v{dst}, 9, v{vL16}")
        e(f"v_lshl_add_u32 v{dst}, v{dst}, 4, v{tmp}")

    def p0(self):
        e = self.e
        PX, PQKV, PPHI, PWO, PG, PU, PD = sPTR, sPTR+2, sPTR+4, sPTR+6, sPTR+10, sPTR+12, sPTR+14
        sSTR, sSO, sDST, sDSTEP, sCS, sGU = sT0, sT1, sT2, sT3, sT4, sT5
        e(f"""
        s_mov_b32 s{sSA}, s{PX}
        s_mov_b32 s{sSA+1}, s{PX+1}
        s_mov_b32 s{sSA+2}, 0x200000
        s_mov_b32 s{sSA+3}, 0x20000
        s_mov_b32 s{sSB}, s{PPHI}
        s_mov_b32 s{sSB+1}, s{PPHI+1}
        s_mov_b32 s{sSB+2}, 16384
        s_mov_b32 s{sSB+3}, 0x20000
        """)
        self.row_addr(vT0, vT1)
        XT = vACC
        e(f"s_add_u32 s{sLD}, s{sOUTO}, 32768")
        e(f"buffer_load_dwordx4 {vr(XT)}, v{vT0}, {sr(sSA)}, s{sOUTO} offen")
        e(f"buffer_load_dwordx4 {vr(XT+4)}, v{vT0}, {sr(sSA)}, s{sLD} offen")
        WP = vACC + 8
        self.lane(vT1)
        e(f"""
        v_bfe_u32 v{vT2}, v{vT1}, 2, 1
        v_lshlrev_b32 v{vT0}, 9, v{vT2}
        v_bfe_u32 v{vTMP}, v{vT1}, 3, 2
        v_lshl_add_u32 v{vT0}, v{vTMP}, 3, v{vT0}
        v_and_b32 v{vTMP}, 3, v{vT1}
        v_lshl_add_u32 v{vT0}, v{vTMP}, 1, v{vT0}
        v_lshrrev_b32 v{vTMP}, 5, v{vT1}
        v_lshl_add_u32 v{vT0}, v{vTMP}, 7, v{vT0}
        s_lshl_b32 s{sLD}, s{sR}, 10
        """)
        for k in range(8):
            e(f"buffer_load_ushort v{WP+k}, v{vT0}, {sr(sSB)}, s{sLD} offen offset:{(8*(k>>2)+(k&3))*32}")
        Lq, Lg, Ld, Lo, Lgo, Lno = [e.label("U") for _ in range(6)]
        def setsrc(pa, pb, size):
            e(f"""
            s_mov_b32 s{sSA}, s{pa}
            s_mov_b32 s{sSA+1}, s{pa+1}
            s_mov_b32 s{sSA+2}, {size}
            s_mov_b32 s{sSB}, s{pb}
            s_mov_b32 s{sSB+1}, s{pb+1}
            s_mov_b32 s{sSB+2}, {size}
            """)
        e(f"""
        s_cmp_ge_u32 s2, 232
        s_cbranch_scc1 {Lno}
        s_cmp_ge_u32 s2, 216
        s_cbranch_scc1 {Lo}
        s_cmp_ge_u32 s2, 160
        s_cbranch_scc1 {Ld}
        s_cmp_ge_u32 s2, 48
        s_cbranch_scc1 {Lg}
        """)
        setsrc(PQKV, PQKV, 512*3072)
        e(f"""
        s_mov_b32 s{sSTR}, 3072
        s_and_b32 s{sCS}, s2, 3
        s_lshr_b32 s{sLD}, s2, 2
        s_lshl_b32 s{sSO}, s{sLD}, 8
        s_lshl_b32 s{sLD}, s{sLD}, 2
        s_add_u32 s{sLD}, s{sLD}, s{sW}
        s_lshr_b32 s{sLD2}, s{sLD}, 4
        s_and_b32 s{sLD}, s{sLD}, 15
        s_mul_i32 s{sLD}, s{sLD}, 3
        s_add_u32 s{sLD2}, s{sLD2}, 2
        s_cmp_ge_u32 s{sLD2}, 3
        s_cselect_b32 s{sDST}, 3, 0
        s_sub_u32 s{sLD2}, s{sLD2}, s{sDST}
        s_add_u32 s{sLD}, s{sLD}, s{sLD2}
        s_mul_i32 s{sDST}, s{sLD}, {TILE}
        s_add_u32 s{sDST}, s{sDST}, {OFF_WQKV}
        s_mov_b32 s{sDSTEP}, 1024
        s_mov_b32 s{sGU}, 0
        s_branch {Lgo}
        {Lg}:
        """)
        setsrc(PG, PU, 512*3584)
        e(f"""
        s_mov_b32 s{sSTR}, 3584
        s_sub_u32 s{sLD}, s2, 48
        s_and_b32 s{sCS}, s{sLD}, 3
        s_lshr_b32 s{sLD}, s{sLD}, 2
        s_lshl_b32 s{sSO}, s{sLD}, 7
        s_lshl_b32 s{sLD}, s{sLD}, 2
        s_add_u32 s{sLD}, s{sLD}, s{sW}
        s_mul_i32 s{sDST}, s{sLD}, {TILE}
        s_add_u32 s{sDST}, s{sDST}, {OFF_WGU}
        s_mov_b32 s{sDSTEP}, 1024
        s_mov_b32 s{sGU}, 1
        s_branch {Lgo}
        """)
        for lab, ptr, size, u0, off, fbs in ((Ld, PD, 1792*1024, 160, OFF_WD, 224*1024), (Lo, PWO, 512*1024, 216, OFF_WO, 65536)):
            e.place(lab)
            setsrc(ptr, ptr, size)
            e(f"""
            s_mov_b32 s{sSTR}, 1024
            s_sub_u32 s{sLD}, s2, {u0}
            s_lshr_b32 s{sCS}, s{sLD}, 2
            s_and_b32 s{sLD}, s{sLD}, 3
            s_lshl_b32 s{sSO}, s{sLD}, 8
            s_lshl_b32 s{sLD}, s{sLD}, 2
            s_add_u32 s{sLD}, s{sLD}, s{sW}
            s_lshr_b32 s{sLD2}, s{sLD}, 1
            s_mul_i32 s{sDST}, s{sLD2}, {fbs}
            s_and_b32 s{sLD}, s{sLD}, 1
            s_lshl_b32 s{sLD}, s{sLD}, 10
            s_add_u32 s{sDST}, s{sDST}, s{sLD}
            s_add_u32 s{sDST}, s{sDST}, {off}
            s_mov_b32 s{sDSTEP}, 2048
            s_mov_b32 s{sGU}, 0
            """)
            if lab == Ld: e(f"s_branch {Lgo}")
        e.place(Lgo)
        STG = 0
        self.lane(vT1)
        e(f"""
        v_lshrrev_b32 v{vT0}, 3, v{vT1}
        v_mul_lo_u32 v{vT0}, v{vT0}, s{sSTR}
        v_and_b32 v{vT2}, 0x70, v{vL16}
        v_add_u32 v{vT0}, v{vT0}, v{vT2}
        s_lshl_b32 s{sLD}, s{sCS}, 2
        s_add_u32 s{sLD}, s{sLD}, s{sW}
        s_lshl_b32 s{sLD}, s{sLD}, 5
        s_mul_i32 s{sLD}, s{sLD}, s{sSTR}
        s_add_u32 s{sLD}, s{sLD}, s{sSO}
        s_cmp_eq_u32 s{sGU}, 1
        s_cselect_b32 s{sLD2}, 0, 128
        s_add_u32 s{sLD2}, s{sLD2}, s{sLD}
        s_lshl_b32 s{sSTR}, s{sSTR}, 3
        s_lshl_b32 s{sSO}, s{sW}, 12
        """)
        for i in range(4):
            e(f"s_add_u32 m0, s{sSO}, {STG + i*1024}")
            e(f"buffer_load_dwordx4 v{vT0}, {sr(sSA)}, s{sLD} offen lds")
            e(f"s_add_u32 m0, s{sSO}, {STG + 16384 + i*1024}")
            e(f"buffer_load_dwordx4 v{vT0}, {sr(sSB)}, s{sLD2} offen lds")
            if i < 3:
                e(f"s_add_u32 s{sLD}, s{sLD}, s{sSTR}")
                e(f"s_add_u32 s{sLD2}, s{sLD2}, s{sSTR}")
        e(f"""
        v_bfe_u32 v{vT0}, v{vT1}, 2, 2
        v_lshrrev_b32 v{vT2}, 5, v{vT1}
        v_lshl_add_u32 v{vT0}, v{vT2}, 2, v{vT0}
        v_lshlrev_b32 v{vT0}, 7, v{vT0}
        v_and_b32 v{vT2}, 3, v{vT1}
        v_lshl_add_u32 v{vT0}, v{vT2}, 3, v{vT0}
        v_bfe_u32 v{vT2}, v{vT1}, 4, 1
        s_cmp_eq_u32 s{sGU}, 1
        s_cselect_b32 s{sLD}, 16384, 32
        v_mul_lo_u32 v{vT2}, v{vT2}, s{sLD}
        v_add_u32 v{vT0}, v{vT0}, v{vT2}
        s_lshr_b32 s{sLD}, s{sW}, 1
        s_lshl_b32 s{sLD}, s{sLD}, 14
        s_and_b32 s{sLD2}, s{sW}, 1
        s_lshl_b32 s{sLD2}, s{sLD2}, 6
        s_add_u32 s{sLD}, s{sLD}, s{sLD2}
        s_lshl_b32 s{sLD2}, s{sW}, 5
        s_cmp_eq_u32 s{sGU}, 1
        s_cselect_b32 s{sLD}, s{sLD2}, s{sLD}
        v_add_u32 v{vT0}, s{sLD}, v{vT0}
        v_mov_b32 v{vWF}, 0x3f803f80
        v_mov_b32 v{vWF+1}, 0x3f803f80
        v_mov_b32 v{vWF+2}, 0x3f803f80
        v_mov_b32 v{vWF+3}, 0x3f803f80
        s_waitcnt vmcnt(0)
        s_barrier
        """)
        F = vSLAB
        for s in range(8):
            e(f"ds_read_b64_tr_b16 {vr(F+4*s,2)}, v{vT0} offset:{STG + s*2048}")
            e(f"ds_read_b64_tr_b16 {vr(F+4*s+2,2)}, v{vT0} offset:{STG + s*2048 + 1024}")
        e(f"""
        s_lshl_b32 s{sLD}, s{sCS}, 3
        s_mul_i32 s{sLD}, s{sLD}, s{sDSTEP}
        s_add_u32 s{sLD}, s{sLD}, s{sDST}
        """)
        CS = vACC + 16
        for s in range(8):
            e(f"buffer_store_dwordx4 {vr(F+4*s)}, v{vL16}, {sr(sWS)}, s{sLD} offen sc1")
            e(f"v_mfma_f32_32x32x16_bf16 {vr(CS,16)}, {vr(vWF)}, {vr(F+4*s)}, {'0' if s == 0 else vr(CS,16)}")
            if s < 7: e(f"s_add_u32 s{sLD}, s{sLD}, s{sDSTEP}")
        e(f"""
        s_cmp_eq_u32 s{sDSTEP}, 1024
        s_cbranch_scc0 {Lno}
        v_cvt_pk_bf16_f32 v{vTMP}, v{CS}, v{CS}
        v_and_b32 v{vTMP+2}, 0xffff0000, v{vTMP}
        v_sub_f32 v{vTMP+2}, v{CS}, v{vTMP+2}
        v_cvt_pk_bf16_f32 v{vTMP+1}, v{vTMP+2}, v{vTMP+2}
        s_lshr_b32 s{sLD}, s{sCS}, 1
        s_lshl_b32 s{sLD}, s{sLD}, 9
        s_and_b32 s{sLD2}, s{sCS}, 1
        s_lshl_b32 s{sLD2}, s{sLD2}, 3
        s_add_u32 s{sLD}, s{sLD}, s{sLD2}
        s_add_u32 s{sLD}, s{sLD}, s{sDST}
        s_add_u32 s{sLD}, s{sLD}, 32768
        s_mov_b32 exec_hi, 0
        buffer_store_dwordx2 {vr(vTMP,2)}, v{vL16}, {sr(sWS)}, s{sLD} offen sc1
        s_mov_b64 exec, -1
        {Lno}:
        s_nop 15
        s_waitcnt vmcnt(0) lgkmcnt(0)
        """)
        self.lane(vT1)
        for k in range(4):
            e(f"v_lshl_or_b32 v{WP+2*k}, v{WP+2*k+1}, 16, v{WP+2*k}")
        e(f"v_and_b32 v{vT2}, 4, v{vT1}")
        e(f"v_cmp_eq_u32 vcc, 0, v{vT2}")
        for k in range(4):
            e(f"v_cndmask_b32 v{vT0}, 0, v{WP+2*k}, vcc")
            e(f"v_accvgpr_write_b32 a{aPHI+k}, v{vT0}")
            e(f"v_cndmask_b32 v{vT0}, v{WP+2*k}, 0, vcc")
            e(f"v_accvgpr_write_b32 a{aPHI+4+k}, v{vT0}")
        e(f"""
        v_and_b32 v{vT0}, 15, v{vT1}
        v_bfe_u32 v{vT2}, v{vT1}, 4, 1
        v_lshlrev_b32 v{vT2}, 2, v{vT2}
        v_sub_u32 v{vT0}, v{vT0}, v{vT2}
        v_mov_b32 v{vT2}, 0x3f803f80
        """)
        for k in range(4):
            q0 = 2 * k if k < 2 else 2 * k + 4
            e(f"""
            v_accvgpr_write_b32 a{aONE+k}, v{vT2}
            v_mov_b32 v{vTMP}, 0
            v_mov_b32 v{vTMP+1}, 0x3f80
            v_cmp_eq_u32 vcc, {q0}, v{vT0}
            v_cndmask_b32 v{vTMP}, v{vTMP}, v{vTMP+1}, vcc
            v_cmp_eq_u32 vcc, {q0+1}, v{vT0}
            v_cndmask_b32 v{vTMP}, v{vTMP}, 1.0, vcc
            v_accvgpr_write_b32 a{aSEL+k}, v{vTMP}
            """)
        for tt in range(2):
            e(f"v_permlane32_swap_b32 v{XT+4*tt}, v{XT+4*tt+2}")
            e(f"v_permlane32_swap_b32 v{XT+4*tt+1}, v{XT+4*tt+3}")
            self.run(self.x_publish(XT + 4*tt, tt, vTMP))
        e(f"""
        v_mov_b32 v{vTMP}, -1
        v_mov_b32 v{vTMP+1}, -1
        v_mov_b32 v{vTMP+2}, -1
        v_mov_b32 v{vTMP+3}, -1
        s_mul_i32 s{sLD}, s{sW}, 544
        s_add_u32 s{sLD}, s{sLD}, s{sKVS}
        s_add_u32 s{sLD2}, s{sLD}, {256*KVREC}
        s_mov_b32 exec_hi, 3
        buffer_store_dwordx4 {vr(vTMP)}, v{vL16}, {sr(sWS)}, s{sLD} offen sc1
        buffer_store_dwordx4 {vr(vTMP)}, v{vL16}, {sr(sWS)}, s{sLD2} offen sc1
        s_mov_b64 exec, 1
        buffer_store_dword v{vZ}, v{vZ}, {sr(sWS)}, s{sMYF} offen sc1
        s_mov_b64 exec, -1
        s_mul_i32 s{sTAG}, s{sEP}, 0x9e3779b1
        s_add_u32 s{sTAG}, s{sTAG}, 0x7f4a7c15
        s_mul_i32 s{sTAG2}, s{sEP}, 0x85ebca6b
        s_add_u32 s{sTAG2}, s{sTAG2}, 0xc2b2ae35
        s_and_b32 s{sTAG2}, s{sTAG2}, 0xfffffff0
        s_or_b32 s{sT0}, s{sTAG2}, s{sXCC}
        v_mov_b32 v{vTMP+4}, s{sTAG}
        v_mov_b32 v{vTMP+5}, s{sT0}
        s_lshl_b32 s{sLD}, s2, 3
        s_add_u32 s{sLD}, s{sLD}, {OFF_G}
        s_waitcnt vmcnt(0)
        s_barrier
        """)
        self.stamp("p0 done")
        Lnf = e.label("NF")
        e(f"""
        s_cmp_eq_u32 s{sW}, 0
        s_cbranch_scc0 {Lnf}
        s_mov_b64 exec, 1
        buffer_store_dwordx2 {vr(vTMP+4,2)}, v{vZ}, {sr(sWS)}, s{sLD} offen sc1
        s_mov_b64 exec, -1
        {Lnf}:
        s_waitcnt vmcnt(0)
        """)
        L = e.label("GP")
        e(f"""
        v_lshrrev_b32 v{vT2}, 1, v{vL16}
        s_lshl_b32 s{sLD}, s{sW}, 9
        s_add_u32 s{sLD}, s{sLD}, {OFF_G}
        s_mov_b32 s{sSPIN}, 0
        {L}:
        s_sleep 8
        buffer_load_dwordx2 {vr(vTMP,2)}, v{vT2}, {sr(sWS)}, s{sLD} offen sc1
        s_add_u32 s{sSPIN}, s{sSPIN}, 1
        s_cmp_gt_u32 s{sSPIN}, 0x80000
        s_cbranch_scc1 L_fail
        s_waitcnt vmcnt(0)
        v_and_b32 v{vTMP+1}, 0xfffffff0, v{vTMP+1}
        v_cmp_ne_u32 vcc, s{sTAG}, v{vTMP}
        v_cmp_ne_u32 {sr(sT0,2)}, s{sTAG2}, v{vTMP+1}
        s_or_b64 {sr(sT0,2)}, vcc, {sr(sT0,2)}
        s_cbranch_scc1 {L}
        s_barrier
        """)
        self.lane(vT1)
        e(f"""
        v_and_b32 v{vT1}, 15, v{vT1}
        v_lshlrev_b32 v{vT1}, 6, v{vT1}
        s_and_b32 s{sLD}, s2, 0x87
        s_lshl_b32 s{sLD}, s{sLD}, 3
        s_add_u32 s{sLD}, s{sLD}, {OFF_G + 4}
        buffer_load_dword v{vT0}, v{vT1}, {sr(sWS)}, s{sLD} offen sc1
        s_or_b32 s{sT2}, s{sTAG2}, s{sXCC}
        v_cmp_ne_u32 vcc, s{sT2}, v{vT0}
        s_cmp_eq_u64 vcc, 0
        s_cselect_b32 s{sWP+2}, {WS_SIZE}, 0
        s_cselect_b32 s{sWI+2}, 0, {WS_SIZE}
        """)
        self.stamp("g sync")

    def x_publish(self, P, tt, T, last=False):
        g = []
        U = T
        S, Q = T + 8, T + 9
        off = tt * 40 * 1024
        g.append([f"s_add_u32 s{sLD2}, s{sXS}, {off}",
                  f"buffer_store_dwordx4 {vr(P)}, v{vL16}, {sr(sWP)}, s{sLD2} offen",
                  f"buffer_store_dwordx4 {vr(P)}, v{vL16}, {sr(sWI)}, s{sLD2} offen sc1"])
        for k in range(4):
            g.append([f"v_lshlrev_b32 v{U+2*k}, 16, v{P+k}"])
            g.append([f"v_and_b32 v{U+2*k+1}, 0xffff0000, v{P+k}"])
        g.append([f"v_add_f32 v{S}, v{U}, v{U+1}"])
        g.append([f"v_mul_f32 v{Q}, v{U}, v{U}"])
        g.append([f"v_fmac_f32 v{Q}, v{U+1}, v{U+1}"])
        for k in range(2, 8):
            g.append([f"v_add_f32 v{S}, v{S}, v{U+k}"])
            g.append([f"v_fmac_f32 v{Q}, v{U+k}, v{U+k}"])
        g.append([f"v_accvgpr_write_b32 a{aRES+8*tt}, v{U}"])
        g.append([f"v_accvgpr_write_b32 a{aRES+8*tt+1}, v{U+1}"])
        g.append([f"v_permlane32_swap_b32 v{S}, v{Q}"])
        g.append([f"v_add_f32 v{S}, v{S}, v{Q}"])
        g.append([f"s_add_u32 s{sLD2}, s{sXST}, {off}",
                  f"buffer_store_dword v{S}, v{vSTO}, {sr(sWP)}, s{sLD2} offen",
                  f"buffer_store_dword v{S}, v{vSTO}, {sr(sWI)}, s{sLD2} offen sc1"])
        for k in range(2, 8):
            g.append([f"v_accvgpr_write_b32 a{aRES+8*tt+k}, v{U+k}"])
        return g

    def stats_groups(self, B):
        g = []
        n = 32
        while n > 1:
            n //= 2
            for i in range(n): g.append([f"v_add_f32 v{B+i}, v{B+i}, v{B+n+i}"])
        g += [[x] for x in f"""
        v_mov_b32 v{B+1}, v{B}
        v_permlane32_swap_b32 v{B}, v{B+1}
        v_mul_f32 v{B}, {hex(f2u(-1.0/512))}, v{B}
        v_mul_f32 v{B+1}, {hex(f2u(1.0/512))}, v{B+1}
        v_fma_f32 v{B+1}, -v{B}, v{B}, v{B+1}
        v_cvt_pk_bf16_f32 v{B+2}, v{B}, v{B}
        v_max_f32 v{B+1}, 0, v{B+1}
        v_and_b32 v{B+3}, 0xffff0000, v{B+2}
        v_add_f32 v{B+1}, {hex(f2u(1e-5))}, v{B+1}
        v_sub_f32 v{B+4}, v{B}, v{B+3}
        v_rsq_f32 v{vC1}, v{B+1}
        v_cvt_pk_bf16_f32 v{vMEAN}, v{B+3}, v{B+4}
        v_cvt_pk_bf16_f32 v{vMEAN+1}, v{B+3}, v{B+4}
        v_cvt_pk_bf16_f32 v{vMEAN+2}, v{B+3}, v{B+4}
        v_cvt_pk_bf16_f32 v{vMEAN+3}, v{B+3}, v{B+4}
        v_mul_f32 v{vC2}, v{B+1}, v{vC1}
        """.strip().split("\n")]
        return g

    def gemm(self, tiles, accs, fill, ksteps=range(33), per_gap=None, start_gap=0):
        e = self.e
        seq = [(s, i) for s in ksteps for i in range(len(tiles))]
        PF = 3
        def rd(j):
            s, i = seq[j]
            e(f"ds_read_b128 {vr(vWF + 4*(j%4))}, v{vSLOT + tiles[i]%4} offset:{s*1024}")
        for j in range(min(PF, len(seq))): rd(j)
        fi = 0
        ngap = len(seq) - start_gap
        for j, (s, i) in enumerate(seq):
            if j + PF < len(seq): rd(j + PF)
            b = vr(vSLAB + 4*s) if s < 32 else vr(vMEAN)
            c = "0" if s == 0 else vr(accs[i], 16)
            e(f"v_mfma_f32_32x32x16_bf16 {vr(accs[i],16)}, {vr(vWF + 4*(j%4))}, {b}, {c}")
            if j >= start_gap:
                want = (len(fill) * (j - start_gap + 1) + ngap - 1) // ngap if per_gap is None else min(len(fill), fi + per_gap)
                while fi < want:
                    self.run([fill[fi]]); fi += 1
        self.run(fill[fi:])

    def softmax_groups(self, P, EP, EN, dst_of):
        g = []
        MX, MN, C = vT0, vT1, vT2
        g.append([f"v_mul_f32 v{C}, {hex(f2u(LOG2E))}, v{vC1}"])
        g.append([f"v_max3_f32 v{MX}, v{P}, v{P+1}, v{P+2}"])
        g.append([f"v_min3_f32 v{MN}, v{P}, v{P+1}, v{P+2}"])
        for k in range(3, 15, 2):
            g.append([f"v_max3_f32 v{MX}, v{MX}, v{P+k}, v{P+k+1}"])
            g.append([f"v_min3_f32 v{MN}, v{MN}, v{P+k}, v{P+k+1}"])
        g.append([f"v_max_f32 v{MX}, v{MX}, v{P+15}"])
        g.append([f"v_min_f32 v{MN}, v{MN}, v{P+15}"])
        g.append([f"v_mul_f32 v{MX}, v{MX}, v{C}"])
        g.append([f"v_mul_f32 v{MN}, v{MN}, v{C}"])
        for k in range(16):
            g.append([f"v_fma_f32 v{EP+k}, v{P+k}, v{C}, -v{MX}"])
            g.append([f"v_fma_f32 v{EN+k}, -v{P+k}, v{C}, v{MN}"])
        for k in range(16):
            g.append([f"v_exp_f32 v{EP+k}, v{EP+k}"])
            g.append([f"v_exp_f32 v{EN+k}, v{EN+k}"])
        g.append([f"v_add_f32 v{MX}, v{EP}, v{EP+1}"])
        g.append([f"v_add_f32 v{MN}, v{EN}, v{EN+1}"])
        for k in range(2, 16):
            g.append([f"v_add_f32 v{MX}, v{MX}, v{EP+k}"])
            g.append([f"v_add_f32 v{MN}, v{MN}, v{EN+k}"])
        g.append([f"v_rcp_f32 v{MX}, v{MX}"])
        g.append([f"v_rcp_f32 v{MN}, v{MN}"])
        for k in range(16):
            g.append([f"v_mul_f32 v{EP+k}, v{EP+k}, v{MX}"])
        for k in range(8):
            g.append([f"v_cvt_pk_bf16_f32 v{dst_of(0,k)}, v{EP+2*k}, v{EP+2*k+1}"])
        for k in range(16):
            g.append([f"v_mul_f32 v{EN+k}, v{EN+k}, v{MN}"])
        for k in range(8):
            g.append([f"v_cvt_pk_bf16_f32 v{dst_of(1,k)}, v{EN+2*k}, v{EN+2*k+1}"])
        return g

    def phi_mfma(self, ACC, P, T):
        e = self.e
        for k in range(8):
            e(f"v_cvt_pk_bf16_f32 v{T+k}, v{ACC+2*k}, v{ACC+2*k+1}")
        e(f"v_mfma_f32_32x32x16_bf16 {vr(P,16)}, {ar(aPHI)}, {vr(T)}, 0")
        e(f"v_mfma_f32_32x32x16_bf16 {vr(P,16)}, {ar(aPHI+4)}, {vr(T+4)}, {vr(P,16)}")

    def slab_groups(self, STAT):
        return self.loads(vSLAB, 32, sXW, sLD) + self.loads(STAT, 8, sXW, sLD, first=32*1024)

    def p1(self, L, xphase):
        e = self.e
        n0 = 10 * L
        AK, AV, AQ, AP = vACC, vACC+16, vACC+32, vACC+48
        if L == 0:
            self.run(self.dma(0) + self.dma(1))
        e("s_waitcnt vmcnt(0)")
        e("s_barrier")
        if xphase: self.poll(vPX, sLF, xphase)
        self.stamp(f"p1.{L} go")
        ld = self.slab_groups(AQ)
        LA = 10
        self.run(ld[:LA])
        fill = []
        for x in ld[LA:]: fill += [x, []]
        self.gemm([n0, n0+1], [AK, AV], fill, ksteps=range(32), per_gap=1)
        tokq = self.run(self.dma(2)) if L == 0 else None
        self.run(self.dma(n0 + 3))
        self.run(self.stats_groups(AQ))
        self.gemm([n0, n0+1], [AK, AV], [], ksteps=[32])
        self.stamp(f"p1.{L} kv gemm")
        self.phi_mfma(AK, AP, vTMP)
        VP = vTMP + 8
        for k in range(16): e(f"v_mul_f32 v{AV+k}, v{AV+k}, v{vC1}")
        for k in range(8): e(f"v_cvt_pk_bf16_f32 v{VP+k}, v{AV+2*k}, v{AV+2*k+1}")
        A1, A2 = vTMP + 16, vTMP + 17
        e(f"""
        v_and_b32 v{A1}, 0x1f0, v{vL16}
        v_lshlrev_b32 v{A1}, 1, v{A1}
        s_lshl_b32 s{sT0}, s{sW}, 10
        s_add_u32 s{sT0}, s{sT0}, {SCR}
        v_add_u32 v{A1}, s{sT0}, v{A1}
        v_lshrrev_b32 v{A2}, 9, v{vL16}
        v_lshl_add_u32 v{vTMP+18}, v{A2}, 4, v{A1}
        v_lshl_add_u32 v{A1}, v{A2}, 13, v{A1}
        """)
        A2 = vTMP + 18
        e(f"ds_write_b128 v{A2}, {vr(VP)} offset:16384")
        e(f"ds_write_b128 v{A2}, {vr(VP+4)} offset:{16384+4096}")
        PK = AQ
        self.run(self.softmax_groups(AP, AK, AV, lambda sg, k: PK + 8*sg + k))
        for sg in range(2):
            e(f"ds_write_b128 v{A1}, {vr(PK+8*sg)} offset:{sg*4096}")
            e(f"ds_write_b128 v{A1}, {vr(PK+8*sg+4)} offset:{sg*4096+16}")
        e(f"""
        v_lshrrev_b32 v{A1}, 1, v{vL16}
        s_lshl_b32 s{sT0}, s{sW}, 12
        s_add_u32 s{sT0}, s{sT0}, {SCR}
        s_lshr_b32 s{sT1}, s{sW}, 1
        s_lshl_b32 s{sT1}, s{sT1}, 12
        s_add_u32 s{sT1}, s{sT1}, {SCR + 16384}
        v_add_u32 v{A2}, s{sT1}, v{A1}
        v_add_u32 v{A1}, s{sT0}, v{A1}
        """)
        e.wait(tokq)
        e("s_waitcnt lgkmcnt(0)")
        e("s_barrier")
        FA, FB = AK, AV
        for s in range(4):
            for hf in range(2):
                e(f"ds_read_b64_tr_b16 {vr(FA+4*s+2*hf,2)}, v{A1} offset:{s*1024+hf*512}")
                e(f"ds_read_b64_tr_b16 {vr(FB+4*s+2*hf,2)}, v{A2} offset:{s*1024+hf*512}")
        KV, ZZ = AP, AP + 4
        for s in range(4):
            e(f"v_mfma_f32_16x16x32_bf16 {vr(KV)}, {vr(FA+4*s)}, {vr(FB+4*s)}, {'0' if s == 0 else vr(KV)}")
            e(f"v_mfma_f32_16x16x32_bf16 {vr(ZZ)}, {vr(FA+4*s)}, {ar(aONE)}, {'0' if s == 0 else vr(ZZ)}")
        G = AP + 8
        e(f"""
        s_lshl_b32 s{sT0}, s{sW}, 9
        v_add_u32 v{A1}, s{sT0}, v{vL16}
        s_lshl_b32 s{sT0}, s{sW}, 5
        s_add_u32 s{sT0}, s{sT0}, 2048
        s_add_u32 s{sT1}, s{sT0}, 16
        v_writelane_b32 v{A1}, s{sT0}, 32
        v_writelane_b32 v{A1}, s{sT1}, 48
        s_add_u32 s{sLD}, s{sKVS}, {L*256*KVREC}
        v_cvt_pk_bf16_f32 v{G}, v{KV}, v{KV+1}
        v_cvt_pk_bf16_f32 v{G+1}, v{KV+2}, v{KV+3}
        v_cvt_pk_bf16_f32 v{G+2}, v{ZZ}, v{ZZ+1}
        v_cvt_pk_bf16_f32 v{G+3}, v{ZZ+2}, v{ZZ+3}
        v_permlane32_swap_b32 v{G}, v{G+2}
        v_permlane32_swap_b32 v{G+1}, v{G+3}
        v_min_u32 v{G}, -2, v{G}
        v_min_u32 v{G+3}, -2, v{G+3}
        s_mov_b32 exec_hi, 0x00010001
        buffer_store_dwordx4 {vr(G)}, v{A1}, {sr(sWS)}, s{sLD} offen sc1
        s_mov_b64 exec, -1
        """)
        self.stamp(f"p1.{L} kv pub")
        self.gemm([n0+2], [AQ], self.dma(n0+4) + self.dma(n0+5))
        WO = vSLAB
        self.run(self.loads(WO, 8, sWO_, sLD, vaddr=vLX, flags="", step=2048))
        e(f"v_xor_b32 v{vTMP+20}, 0x400, v{vLX}")
        self.run(self.loads(WO + 32, 8, sWO_, sLD, vaddr=vTMP+20, flags="", step=2048))
        self.phi_mfma(AQ, AP, vTMP)
        PQ = AQ
        def pq_dst(sg, k):
            g = (k >> 1) & 1
            return PQ + 8*sg + 4*g + (k & 1) + 2*(k >> 2)
        self.run(self.softmax_groups(AP, AK, AV, pq_dst))
        self.stamp(f"p1.{L} q done")
        KP = vSLAB + 64
        ZP = KP + 32
        OA = AK
        for k in range(32): e(f"v_mov_b32 v{OA+k}, 0")
        e(f"""
        v_lshrrev_b32 v{A1}, 9, v{vL16}
        v_mul_u32_u24 v{A1}, {KVREC}, v{A1}
        v_and_b32 v{A2}, 0x1f0, v{vL16}
        v_add_u32 v{A1}, v{A1}, v{A2}
        s_lshl_b32 s{sT0}, s{sW}, 9
        v_add_u32 v{A1}, s{sT0}, v{A1}
        v_bfe_u32 v{A2}, v{vL16}, 4, 4
        v_mul_u32_u24 v{A2}, {KVREC}, v{A2}
        v_bfe_u32 v{vT0}, v{vL16}, 8, 1
        v_lshl_add_u32 v{A2}, v{vT0}, 4, v{A2}
        s_lshl_b32 s{sT0}, s{sW}, 5
        s_add_u32 s{sT0}, s{sT0}, 2048
        v_add_u32 v{A2}, s{sT0}, v{A2}
        s_mov_b32 s{sSPIN}, 0
        """)
        Lk = e.label("KV")
        e.place(Lk)
        for i in range(8):
            e(f"s_add_u32 s{sLD}, s{sKVL}, {L*256*KVREC + 2*i*KVREC}")
            e(f"buffer_load_dwordx4 {vr(KP+4*i)}, v{A1}, {sr(sWS)}, s{sLD} offen sc1")
        e(f"s_add_u32 s{sLD}, s{sKVL}, {L*256*KVREC}")
        e(f"buffer_load_dwordx4 {vr(ZP)}, v{A2}, {sr(sWS)}, s{sLD} offen sc1")
        e(f"s_add_u32 s{sSPIN}, s{sSPIN}, 1")
        e(f"s_cmp_gt_u32 s{sSPIN}, 0x80000")
        e("s_cbranch_scc1 L_fail")
        e("s_waitcnt vmcnt(0)")
        e(f"v_max_u32 v{vT0}, v{ZP}, v{ZP+3}")
        for i in range(8):
            e(f"v_max3_u32 v{vT0}, v{vT0}, v{KP+4*i}, v{KP+4*i+3}")
        e(f"v_cmp_eq_u32 vcc, -1, v{vT0}")
        e(f"s_cbranch_vccnz {Lk}")
        self.stamp(f"p1.{L} kv got")
        for i in range(8):
            e(f"v_mfma_f32_16x16x32_bf16 {vr(KV)}, {ar(aSEL)}, {vr(KP+4*i)}, {'0' if i == 0 else vr(KV)}")
        KVB = SCR + 24576
        e(f"""
        v_and_b32 v{A2}, 0x1f0, v{vL16}
        s_lshl_b32 s{sT0}, s{sW}, 9
        s_add_u32 s{sT0}, s{sT0}, {KVB}
        v_add_u32 v{A2}, s{sT0}, v{A2}
        s_mov_b32 exec_hi, 0
        ds_write_b128 v{A2}, {vr(ZP)} offset:2048
        s_mov_b64 exec, -1
        v_and_b32 v{A1}, 0x130, v{vL16}
        v_bfe_u32 v{vT0}, v{vL16}, 6, 1
        v_lshl_add_u32 v{A1}, v{vT0}, 7, v{A1}
        v_bfe_u32 v{vT0}, v{vL16}, 7, 1
        v_lshl_add_u32 v{A1}, v{vT0}, 6, v{A1}
        v_lshrrev_b32 v{vT0}, 9, v{vL16}
        v_lshl_add_u32 v{A1}, v{vT0}, 3, v{A1}
        v_add_u32 v{A1}, s{sT0}, v{A1}
        v_cvt_pk_bf16_f32 v{G}, v{KV}, v{KV+1}
        v_cvt_pk_bf16_f32 v{G+1}, v{KV+2}, v{KV+3}
        ds_write_b64 v{A1}, {vr(G,2)}
        v_and_b32 v{A2}, 0xf0, v{vL16}
        v_lshl_add_u32 v{A2}, v{vT0}, 10, v{A2}
        v_add_u32 v{A2}, {KVB}, v{A2}
        s_waitcnt lgkmcnt(0)
        s_barrier
        s_mov_b32 exec_lo, 0x0000ffff
        s_mov_b32 exec_hi, 0xffff0000
        """)
        for s in range(4):
            e(f"ds_read_b128 {vr(OA+4*s)}, v{A2} offset:{s*256}")
            e(f"ds_read_b128 {vr(OA+16+4*s)}, v{A2} offset:{2048+s*256}")
        e("s_mov_b64 exec, -1")
        NUM, DEN = AP, KP
        for s in range(4):
            e(f"v_mfma_f32_32x32x16_bf16 {vr(DEN,16)}, {vr(OA+16+4*s)}, {vr(PQ+4*s)}, {'0' if s == 0 else vr(DEN,16)}")
        for s in range(4):
            e(f"v_mfma_f32_32x32x16_bf16 {vr(NUM,16)}, {vr(OA+4*s)}, {vr(PQ+4*s)}, {'0' if s == 0 else vr(NUM,16)}")
        for n in (4, 2, 1):
            for hd in range(2):
                for i in range(n): e(f"v_add_f32 v{DEN+8*hd+i}, v{DEN+8*hd+i}, v{DEN+8*hd+n+i}")
        e(f"""
        v_mov_b32 v{DEN+1}, v{DEN}
        v_mov_b32 v{DEN+9}, v{DEN+8}
        v_permlane32_swap_b32 v{DEN}, v{DEN+1}
        v_permlane32_swap_b32 v{DEN+8}, v{DEN+9}
        v_add_f32 v{DEN}, v{DEN}, v{DEN+1}
        v_add_f32 v{DEN+8}, v{DEN+8}, v{DEN+9}
        v_add_f32 v{DEN}, {hex(f2u(1e-6))}, v{DEN}
        v_add_f32 v{DEN+8}, {hex(f2u(1e-6))}, v{DEN+8}
        v_rcp_f32 v{DEN}, v{DEN}
        v_rcp_f32 v{DEN+8}, v{DEN+8}
        """)
        for hd in range(2):
            for k in range(8): e(f"v_mul_f32 v{NUM+8*hd+k}, v{NUM+8*hd+k}, v{DEN+8*hd}")
            for k in range(4): e(f"v_cvt_pk_bf16_f32 v{vTMP+4*hd+k}, v{NUM+8*hd+2*k}, v{NUM+8*hd+2*k+1}")
            self.store2("buffer_store_dwordx4", vr(vTMP+4*hd), vL16, sOS, hd*1024)
        ph = self.signal()
        self.stamp(f"p1.{L} o pub")
        return ph

    def splitk(self, name, nk, wreg, sbase, tgstride, phase, ABUF, ring, pre, last=False):
        e = self.e
        acc = [vACC, vACC+16, vACC+32, vACC+48]
        AW, AR = vMEAN, vMEAN + 3
        for tt in range(2):
            for k in range(8): e(f"v_accvgpr_read_b32 v{acc[2*tt]+k}, a{aRES+8*tt+k}")
            for k in range(8, 16): e(f"v_mov_b32 v{acc[2*tt]+k}, 0")
        for q in range(1, 4):
            e(f"s_xor_b32 s{sT0}, s{sW}, {q}")
            e(f"s_mul_i32 s{sT0}, s{sT0}, 6144")
            e(f"s_add_u32 s{sT0}, s{sT0}, {SCR + (q-1)*2048}")
            e(f"v_add_u32 v{AW+q-1}, s{sT0}, v{vL16}")
        e(f"s_mul_i32 s{sT0}, s{sW}, 6144")
        e(f"s_add_u32 s{sT0}, s{sT0}, {SCR}")
        e(f"v_add_u32 v{AR}, s{sT0}, v{vL16}")
        if last: self.row_addr(vC1, vC2)
        self.run(pre)
        self.poll(vPO, sLF, phase)
        self.stamp(f"{name} go")
        ld = []
        for tt in range(2):
            for i in range(nk):
                x = []
                if i % 4 == 0: x.append(f"s_add_u32 s{sLD}, s{sbase}, {tt*tgstride + i*1024}")
                r = ABUF + 4 * ((tt*nk + i) % ring)
                x.append(f"buffer_load_dwordx4 {vr(r)}, v{vL16}, {sr(sWS)}, s{sLD} offen offset:{(i%4)*1024} sc1")
                ld.append(x)
        LA = min(10, ring - 1)
        self.run(ld[:LA])
        RB = vTMP + 4
        def red_write(tt):
            return [[f"ds_write_b128 v{AW+q-1}, {vr(acc[2*tt] + 8*q + 4*hf)} offset:{hf*1024}"] for q in range(1, 4) for hf in range(2)]
        def red_read():
            return [[f"ds_read_b128 {vr(RB + 4*j)}, v{AR} offset:{j*1024}"] for j in range(6)]
        def red_fin(tt):
            g = []
            O = acc[2*tt]
            for q in range(3):
                for k in range(8): g.append([f"v_add_f32 v{O+k}, v{O+k}, v{RB+8*q+k}"])
            for k in range(4): g.append([f"v_cvt_pk_bf16_f32 v{vTMP+k}, v{O+2*k}, v{O+2*k+1}"])
            if last:
                g.append([f"v_permlane32_swap_b32 v{vTMP}, v{vTMP+2}"])
                g.append([f"v_permlane32_swap_b32 v{vTMP+1}, v{vTMP+3}"])
                g.append([f"s_add_u32 s{sLD2}, s{sOUTO}, {tt*32768}",
                          f"buffer_store_dwordx4 {vr(vTMP)}, v{vC1}, {sr(sOUT)}, s{sLD2} offen"])
            else:
                g += self.x_publish(vTMP, tt, O + 8)
            return g
        BAR = [["s_waitcnt lgkmcnt(0)", "s_barrier"]]
        side = []
        for tt in range(2):
            if tt == 1: side = [[], [], []] + red_write(0) + BAR + red_read() + BAR + red_fin(0)
            si = 0
            for i in range(nk):
                j = tt * nk + i
                if j + LA < len(ld): self.run([ld[j + LA]])
                a_ = vr(ABUF + 4 * (j % ring))
                for ft in range(2):
                    c = "0" if (i == 0 and ft == 1) else vr(acc[2*tt+ft], 16)
                    e(f"v_mfma_f32_32x32x16_bf16 {vr(acc[2*tt+ft],16)}, {wreg(i, ft)}, {a_}, {c}")
                    want = min(len(side), si + (3 if si >= 17 else 1))
                    while si < want:
                        self.run([side[si]]); si += 1
            self.run(side[si:])
        self.stamp(f"{name} gemm")
        self.run(red_write(1) + BAR + red_read() + red_fin(1))
        if last: return None
        ph = self.signal()
        self.stamp(f"{name} pub")
        return ph

    def p2(self, L, phase):
        return self.splitk(f"p2.{L}", 8, lambda ks, ft: vr(vSLAB + 32*ft + 4*ks), sOL, 32*1024, phase,
                           vSLAB + 64, 16, self.dma(10*L + 6))

    def p4(self, L, phase):
        return self.splitk(f"p4.{L}", 28, lambda ks, ft: ar(aWD + 112*ft + 4*ks), sHL, 112*1024, phase,
                           vSLAB, 32, [], last=(L == 1))

    def glu_groups(self, ACC, tau):
        g = []
        T = vTMP + 4
        for k in range(8): g.append([f"v_mul_f32 v{T+k}, v{ACC+k}, v{vC1}"])
        for k in range(8): g.append([f"v_exp_f32 v{T+k}, v{T+k}"])
        for k in range(8): g.append([f"v_fma_f32 v{T+k}, v{T+k}, v{vC2}, v{vC2}"])
        for k in range(8): g.append([f"v_rcp_f32 v{T+k}, v{T+k}"])
        for k in range(8): g.append([f"v_mul_f32 v{T+k}, v{T+k}, v{ACC+8+k}"])
        for k in range(4): g.append([f"v_cvt_pk_bf16_f32 v{vTMP+k}, v{T+2*k}, v{T+2*k+1}"])
        g.append([f"s_add_u32 s{sLD2}, s{sHS}, {tau*1024}",
                  f"buffer_store_dwordx4 {vr(vTMP)}, v{vL16}, {sr(sWS)}, s{sLD2} offen sc1"])
        return g

    @staticmethod
    def mix(a, b):
        out, i, j = [], 0, 0
        while i < len(a) or j < len(b):
            if j >= len(b) or (i < len(a) and i * len(b) <= j * len(a)):
                out.append(a[i]); i += 1
            else:
                out.append(b[j]); j += 1
        return out

    def p3(self, L, xphase):
        e = self.e
        n0 = 10 * L + 3
        acc = [vACC, vACC+16, vACC+32]
        e("s_waitcnt vmcnt(0)")
        e("s_barrier")
        self.poll(vPX, sLF, xphase)
        self.stamp(f"p3.{L} go")
        ld = self.slab_groups(vACC + 32)
        LA = 10
        self.run(ld[:LA])
        fill = []
        for x in ld[LA:]: fill += [x, []]
        self.gemm([n0, n0+1], acc[:2], fill, ksteps=range(32), per_gap=1)
        self.run(self.stats_groups(vACC + 32))
        e(f"v_mul_f32 v{vC1}, {hex(f2u(-LOG2E))}, v{vC1}")
        self.gemm([n0, n0+1], acc[:2], [], ksteps=[32])
        self.stamp(f"p3.{L} pair")
        wd = []
        if L == 0:
            e(f"v_xor_b32 v{vTMP+20}, 0x400, v{vLX}")
            wd = (self.loads(aWD, 28, sWD_, sLD, vaddr=vLX, flags="", step=2048, agpr=True) +
                  self.loads(aWD + 112, 28, sWD_, sLD, vaddr=vTMP+20, flags="", step=2048, agpr=True))
        landed = {}
        for tau in range(2, 7):
            if n0 + tau in landed: e.wait(landed[n0 + tau])
            e("s_barrier")
            new = [n0+4, n0+5] if tau == 2 else [n0 + tau + 3]
            epi = (self.glu_groups(acc[0], 0) + self.glu_groups(acc[1], 1)) if tau == 2 else self.glu_groups(acc[(tau-1) % 3], tau - 1)
            mem = []
            marks = {}
            for n in new:
                d = self.dma(n)
                if d:
                    mem += d; marks[id(d[-1])] = n
            k0, k1 = (tau - 2) * 12, (tau - 1) * 12
            k0 -= k0 % 2; k1 -= k1 % 2
            mem = mem + wd[k0:k1]
            fill = self.mix(epi, mem)
            orig_run = self.run
            def run2(groups):
                tok = None
                for g in groups:
                    t = orig_run([g])
                    if id(g) in marks: landed[marks[id(g)]] = t
                    tok = t or tok
                return tok
            self.run = run2
            self.gemm([n0 + tau], [acc[tau % 3]], fill, start_gap=2)
            self.run = orig_run
        self.stamp(f"p3.{L} gemm")
        self.run(self.glu_groups(acc[6 % 3], 6))
        ph = self.signal()
        self.stamp(f"p3.{L} pub")
        return ph

    def build(self):
        e = self.e
        self.prologue()
        self.p0()
        ph = 0
        steps = 0
        for L in range(2):
            for f in (self.p1, self.p2, self.p3, self.p4):
                if self.stop is not None and steps >= self.stop: break
                ph = f(L, ph)
                steps += 1
        self.stamp("end")
        Ls = e.label("SK")
        e(f"""
        s_or_b32 s{sT0}, s2, s{sW}
        s_cmp_eq_u32 s{sT0}, 0
        s_cbranch_scc0 {Ls}
        s_add_u32 s{sT0}, s{sEP}, 1
        v_mov_b32 v{vT0}, s{sT0}
        s_mov_b64 exec, 1
        buffer_store_dword v{vT0}, v{vZ}, {sr(sWS)}, 0 offen
        s_mov_b64 exec, -1
        {Ls}:
        """)
        e.place("L_fail")
        if self.dbg == 2:
            e(f"""
            s_mov_b64 exec, -1
            s_memrealtime {sr(sTS,2)}
            s_waitcnt lgkmcnt(0)
            s_sub_u32 s{sTS}, s{sTS}, s78
            v_writelane_b32 v{vSTAMP}, s{sTS}, 15
            s_mov_b32 s{sSA}, s{sPTR+18}
            s_mov_b32 s{sSA+1}, s{sPTR+19}
            s_mov_b32 s{sSA+2}, 256
            s_mov_b32 s{sSA+3}, 0x20000
            s_or_b32 s{sT0}, s2, s{sW}
            s_cmp_eq_u32 s{sT0}, 0
            s_cbranch_scc0 L_end
            v_lshrrev_b32 v{vT0}, 2, v{vL16}
            buffer_store_dword v{vSTAMP}, v{vT0}, {sr(sSA)}, 0 offen
            """)
        elif self.dbg:
            e(f"""
            s_mov_b64 exec, -1
            s_lshl_b32 s{sT0}, s2, 2
            s_add_u32 s{sT0}, s{sT0}, s{sW}
            s_lshl_b32 s{sT0}, s{sT0}, 8
            s_add_u32 s{sT0}, s{sT0}, {OFF_DBG}
            v_lshrrev_b32 v{vT0}, 2, v{vL16}
            buffer_store_dword v{vSTAMP}, v{vT0}, {sr(sWS)}, s{sT0} offen
            """)
        e.place("L_end")
        e("s_endpgm")
        return e.text()

HEADER = open(os.path.join(os.path.dirname(os.path.abspath(__file__)), "header.txt")).read()

def generate(path, dbg=False, stop=None):
    k = K(dbg=dbg, stop=stop)
    body = k.build()
    open(path, "w").write(wrap(body, 256, 256, LDS_SIZE, header=HEADER))
    return k

if __name__ == "__main__":
    import argparse
    ap = argparse.ArgumentParser()
    ap.add_argument("out"); ap.add_argument("--dbg", type=int, default=0); ap.add_argument("--stop", type=int)
    a = ap.parse_args()
    k = generate(a.out, a.dbg, a.stop)
    print("nops", k.e.nops, k.e.count)
    if a.dbg: open(a.out + ".stamps", "w").write("\n".join(k.stamp_names))
```

```python
import re

KNAME = "interleave_layers__linear_kernel_hedgehog__glu_gated_glu__prompt_kernel"

_RNG = re.compile(r"^(-?)(?:abs\()?([vas])\[(\d+):(\d+)\]\)?$")
_ONE = re.compile(r"^(-?)(?:abs\()?([vas])(\d+)\)?$")

def regs_of(tok):
    tok = tok.strip()
    m = _RNG.match(tok)
    if m: return [(m.group(2), i) for i in range(int(m.group(3)), int(m.group(4)) + 1)]
    m = _ONE.match(tok)
    if m: return [(m.group(2), int(m.group(3)))]
    if tok in ("vcc", "vcc_lo", "vcc_hi"): return [("s", "vcc")]
    if tok in ("exec", "exec_lo", "exec_hi"): return [("s", "exec")]
    if tok == "m0": return [("s", "m0")]
    return []

TRANS = ("v_exp_f32", "v_log_f32", "v_rcp_f32", "v_rsq_f32", "v_sqrt_f32", "v_sin_f32", "v_cos_f32")

class Ins:
    __slots__ = ("text", "op", "kind", "rd", "wr", "states", "passes", "A", "B", "C", "D", "wide", "data", "lds")
    def __init__(self, text):
        self.text = text
        body = text.split(";")[0].strip()
        p = body.split(None, 1)
        self.op = op = p[0]
        rest = p[1] if len(p) > 1 else ""
        rest = re.sub(r"\s(op_sel|op_sel_hi|neg_lo|neg_hi):\[[^\]]*\]", "", rest)
        ops = [x.strip() for x in rest.split(",")] if rest else []
        if ops:
            last = ops[-1].split()
            mods = last[1:]
            ops[-1] = last[0] if last else ""
        else: mods = []
        self.rd, self.wr = [], []
        self.states = 1; self.passes = 0; self.A = self.B = self.C = self.D = None
        self.wide = False; self.data = []; self.lds = False
        R = [regs_of(o) for o in ops]
        flat = lambda L: [r for x in L for r in x]
        if op.startswith("v_mfma"):
            self.kind = "mfma"
            self.passes = 8 if "32x32" in op else 4
            self.D, self.A, self.B, self.C = R[0], R[1], R[2], R[3]
            self.wr = R[0]; self.rd = R[1] + R[2] + R[3]
        elif op.startswith("v_"):
            self.kind = "trans" if op.startswith(TRANS) else "valu"
            if op.startswith("v_permlane") :
                self.wr = R[0] + R[1]; self.rd = R[0] + R[1]
            elif op.startswith(("v_add_co", "v_sub_co", "v_addc_co", "v_subb_co")):
                self.wr = R[0] + R[1]; self.rd = flat(R[2:])
            elif op.startswith(("v_fmac", "v_dot2c", "v_writelane", "v_pk_fmac")):
                self.wr = R[0]; self.rd = flat(R)
            elif op == "v_nop":
                pass
            else:
                self.wr = R[0]; self.rd = flat(R[1:])
                if "dpp" in op or any(m.startswith(("row_", "quad_perm")) for m in mods): self.rd = self.rd + R[0]
        elif op.startswith("s_getpc"):
            self.kind = "salu"; self.wr = R[0]
        elif op.startswith("ds_read") or op.startswith("ds_bpermute") or op.startswith("ds_swizzle"):
            self.kind = "dsr"; self.wr = R[0]; self.rd = flat(R[1:])
        elif op.startswith("ds_"):
            self.kind = "dsw"; self.rd = flat(R)
        elif op.startswith("buffer_load"):
            self.kind = "vml"
            if "lds" in mods:
                self.lds = True; self.rd = flat(R) + [("s", "m0")]
            else:
                self.wr = R[0]; self.rd = flat(R[1:])
        elif op.startswith("global_load"):
            self.kind = "vml"; self.wr = R[0]; self.rd = flat(R[1:])
        elif op.startswith("buffer_store"):
            self.kind = "vms"; self.rd = flat(R); self.data = R[0]
            self.wide = op.endswith(("x3", "x4"))
        elif op.startswith("s_load") or op.startswith("s_memtime") or op.startswith("s_memrealtime"):
            self.kind = "smem"; self.wr = R[0]; self.rd = flat(R[1:])
        elif op == "s_nop":
            self.kind = "nop"; self.states = int(ops[0], 0) + 1
        elif op.startswith("s_"):
            self.kind = "salu"
            if op.startswith(("s_cmp", "s_bitcmp", "s_cbranch", "s_branch", "s_waitcnt", "s_barrier", "s_sleep", "s_setprio", "s_endpgm")):
                self.rd = flat(R)
            else:
                self.wr = R[0]; self.rd = flat(R[1:])
        else:
            raise ValueError("unknown instruction " + text)

def ov(a, b):
    return bool(set(a) & set(b))

def need_states(p, c):
    n = 0
    pv = p.kind in ("valu", "trans")
    cv = c.kind in ("valu", "trans")
    pw_v = [r for r in p.wr if r[0] in "va"]
    pw_s = [r for r in p.wr if r[0] == "s"]
    if pv:
        if c.kind == "mfma" and ov(pw_v, c.rd): n = max(n, 2)
        if cv and c.op.startswith("v_permlane") and ov(pw_v, c.rd): n = max(n, 2)
        if cv and ("dpp" in c.op or "row_" in c.text or "quad_perm" in c.text) and ov(pw_v, c.rd): n = max(n, 2)
        if cv and c.op.startswith(("v_readlane", "v_readfirstlane")) and ov(pw_v, c.rd): n = max(n, 1)
        if p.kind == "trans" and c.kind != "trans" and ov(pw_v, c.rd): n = max(n, 1)
        if pw_s:
            if c.kind in ("vml", "vms") and ov(pw_s, c.rd): n = max(n, 5)
            if cv and ov(pw_s, c.rd): n = max(n, 4 if c.op.startswith(("v_readlane", "v_writelane")) else 2)
            if cv and c.op.startswith("v_cndmask") and ("s", "vcc") in pw_s: n = max(n, 2)
            if c.kind in ("salu", "smem") and ov(pw_s, c.rd): n = max(n, 1)
    if p.kind == "mfma":
        far = 12 if p.passes == 8 else 8
        if c.kind == "mfma":
            if ov(p.D, c.A) or ov(p.D, c.B): n = max(n, far)
            if ov(p.D, c.C):
                if not (p.D == c.C and p.passes == c.passes): n = max(n, far - 2)
            elif ov(p.D, c.D): n = max(n, far)
        elif c.kind in ("valu", "trans", "dsr", "dsw", "vml", "vms"):
            if ov(p.D, c.rd) or ov(p.D, c.wr): n = max(n, far)
            if ov(p.C, c.wr): n = max(n, 7 if p.passes == 8 else 3)
    if p.kind == "vms" and p.wide and ov(p.data, c.wr): n = max(n, 2)
    if p.kind == "salu" and ("s", "m0") in p.wr and c.kind == "vml" and c.lds: n = max(n, 1)
    return n

class E:
    def __init__(self):
        self.out = []
        self.hist = []
        self.vm = []
        self.lg = []
        self.pend = {}
        self.smem_out = False
        self.nid = 0
        self.nops = 0
        self.nlab = 0
        self.count = {}
    def label(self, base="L"):
        self.nlab += 1
        return f"{base}_{self.nlab}"
    def raw(self, s): self.out.append(s)
    def comment(self, s): self.out.append("    ; " + s)
    def place(self, lab): self.out.append(lab + ":")
    def _push(self, ins):
        self.out.append("    " + ins.text)
        self.hist.append(ins)
        if len(self.hist) > 24: self.hist.pop(0)
        self.count[ins.kind] = self.count.get(ins.kind, 0) + 1
    def _retire(self, q, n):
        lst = self.vm if q == "vm" else self.lg
        done = set(lst[:max(0, len(lst) - n)])
        if not done: return
        del lst[:len(lst) - n]
        self.pend = {r: v for r, v in self.pend.items() if not (v[0] == q and v[1] in done)}
        if q == "lg" and n == 0: self.smem_out = False
    def waitcnt(self, vm=None, lg=None):
        parts = []
        if vm is not None: parts.append(f"vmcnt({min(vm, 62)})")
        if lg is not None: parts.append(f"lgkmcnt({min(lg, 14)})")
        self._push(Ins("s_waitcnt " + " ".join(parts)))
        if vm is not None: self._retire("vm", min(vm, 62))
        if lg is not None: self._retire("lg", min(lg, 14))
    def wait(self, *toks):
        vm = lg = None
        for t in toks:
            if t is None: continue
            q, i = t
            lst = self.vm if q == "vm" else self.lg
            if i not in lst: continue
            n = len(lst) - 1 - lst.index(i)
            if q == "lg" and self.smem_out: n = 0
            if q == "vm": vm = n if vm is None else min(vm, n)
            else: lg = n if lg is None else min(lg, n)
        if vm is not None or lg is not None: self.waitcnt(vm, lg)
    def drain(self):
        if self.vm or self.lg: self.waitcnt(0 if self.vm else None, 0 if self.lg else None)
    def __call__(self, text):
        tok = None
        for line in text.strip("\n").split("\n"):
            line = line.strip()
            if not line or line.startswith(";"): continue
            if line.endswith(":"):
                self.place(line[:-1]); continue
            tok = self.ins(line)
        return tok
    def settle(self, line):
        c = Ins(line)
        self.wait(*[self.pend[r] for r in set(c.rd) | set(c.wr) if r in self.pend])
        if c.kind in ("vml", "vms") and len(self.vm) >= 52: self.waitcnt(vm=40)
        need, dist = 0, 2
        for p in reversed(self.hist):
            need = max(need, need_states(p, c) - dist)
            dist += p.states
            if dist >= 20: break
        while need > 0:
            k = min(need, 16)
            self._push(Ins(f"s_nop {k-1}")); self.nops += k; need -= k
    def ins(self, line):
        c = Ins(line)
        if c.op == "s_waitcnt":
            m = re.search(r"vmcnt\((\d+)\)", line); v = int(m.group(1)) if m else None
            m = re.search(r"lgkmcnt\((\d+)\)", line); l = int(m.group(1)) if m else None
            self.waitcnt(v, l); return None
        self.wait(*[self.pend[r] for r in set(c.rd) | set(c.wr) if r in self.pend])
        if c.kind in ("vml", "vms") and len(self.vm) >= 52: self.waitcnt(vm=40)
        need, dist = 0, 0
        for p in reversed(self.hist):
            need = max(need, need_states(p, c) - dist)
            dist += p.states
            if dist >= 20: break
        while need > 0:
            k = min(need, 16)
            self._push(Ins(f"s_nop {k-1}")); self.nops += k; need -= k
        self._push(c)
        tok = None
        if c.kind in ("vml", "vms"):
            self.nid += 1; self.vm.append(self.nid); tok = ("vm", self.nid)
            assert len(self.vm) <= 63, "too many outstanding vmem ops"
        elif c.kind in ("dsr", "dsw", "smem"):
            self.nid += 1; self.lg.append(self.nid); tok = ("lg", self.nid)
            if c.kind == "smem": self.smem_out = True
        if tok and c.kind in ("vml", "dsr", "smem"):
            for r in c.wr: self.pend[r] = tok
        return tok
    def text(self): return "\n".join(self.out) + "\n"

def wrap(body, grid, block, lds, header="", vgpr=512, accum=256, sgpr=102):
    return f"""{header}; @launch grid=({grid},1,1) block=({block},1,1) lds={lds}
.amdgcn_target "amdgcn-amd-amdhsa--gfx950"
.text
.globl {KNAME}
.p2align 8
.type {KNAME},@function
{KNAME}:
{body}
.section .rodata,"a"
.p2align 6
.amdhsa_kernel {KNAME}
  .amdhsa_next_free_vgpr {vgpr}
  .amdhsa_next_free_sgpr {sgpr}
  .amdhsa_accum_offset {accum}
  .amdhsa_group_segment_fixed_size 0
  .amdhsa_kernarg_size 88
  .amdhsa_user_sgpr_count 2
  .amdhsa_user_sgpr_kernarg_segment_ptr 1
  .amdhsa_system_sgpr_workgroup_id_x 1
  .amdhsa_float_denorm_mode_32 3
.end_amdhsa_kernel
"""
```

```python
import sys, os, struct
sys.path.insert(0, os.path.dirname(os.path.abspath(__file__)))
from emit import *

OFF_EPOCH = 0
OFF_F2    = 0x1000
OFF_LF    = 0x2000
OFF_F1    = 0x8000
OFF_KV    = 0x10000
KVREC     = 2176
TILE      = 33792
OFF_WQKV  = 0x200000
OFF_WGU   = 0x400000
OFF_WD    = 0x800000
OFF_WO    = 0xA00000
OFF_X     = 0xB00000
XTG       = 34 * 1024
OFF_O     = 0xE00000
OFF_H     = 0x1000000
OFF_DBG   = 0x2000000
WS_SIZE   = 0x10000000
SCR       = 4 * TILE
KVB       = SCR + 24576
LDS_SIZE  = 163840

sWS, sSA, sSB = 8, 20, 24
sPURE = 12
sW, sR, sC, sTH, sFB = 28, 29, 30, 31, 32
sEP, sTAG, sTAG2, sXCC = 33, 34, 35, 36
sLF, sMYF = 37, 38
sXW, sXS, sXST = 39, 40, 41
sOS, sOL, sHS, sHL = 42, 43, 44, 45
sWG33, sWG, sWD_, sWO_ = 46, 47, 48, 49
sSQ = 16
sM0Q, sROT = 14, 15
sKVS, sKVL = 50, 51
sM0W = 52
sUNIT = 53
sEXQ = 54
sT0, sT1, sT2, sT3, sT4, sT5 = 56, 57, 58, 59, 60, 61
sSPIN = 62
sDMA, sLD, sLD2, sLD3 = 63, 64, 65, 66
sOUT = 68
sOUTO = 72
sTS, sT0S, sRT0 = 74, 76, 78
sPTR = 80
sPC = 4
sUDST, sUSTEP, sUCS = 3, 6, 7

vSTAMP = 0
vL16, vSLOT, vLX, vLX2, vPX, vPO, vZ, vL4 = 1, 2, 6, 7, 8, 9, 10, 11
vC1, vC2, vT0, vT1 = 12, 13, 14, 15
vMEAN, vWF, vTMP, vT2, vPOLL, vACC, vSLAB = 16, 20, 36, 62, 63, 64, 128
aWD, aRES, aPHI, aSEL, aONE = 0, 224, 240, 248, 252

LOG2E = 1.4426950408889634
def f2u(x): return hex(struct.unpack("<I", struct.pack("<f", x))[0])
def vr(b, n=4): return f"v[{b}:{b+n-1}]"
def ar(b, n=4): return f"a[{b}:{b+n-1}]"
def sr(b, n=4): return f"s[{b}:{b+n-1}]"
def G(text): return [[x.strip()] for x in text.strip().split("\n") if x.strip()]

def pk(op, dst, *srcs, neg=None):
    ops, lo, hi = [], [], []
    for s_ in srcs:
        if isinstance(s_, tuple):
            r = s_[1]; ops.append(vr(r & ~1, 2)); lo.append(r & 1); hi.append(r & 1)
        else:
            assert s_ % 2 == 0; ops.append(vr(s_, 2)); lo.append(0); hi.append(1)
    assert dst % 2 == 0
    t = f"{op} {vr(dst,2)}, " + ", ".join(ops) + f" op_sel:[{','.join(map(str,lo))}] op_sel_hi:[{','.join(map(str,hi))}]"
    if neg: t += f" neg_lo:[{','.join(map(str,neg))}] neg_hi:[{','.join(map(str,neg))}]"
    return t

def mix(a, b, lead=0, span=None):
    span = len(a) - lead if span is None else min(span, len(a) - lead)
    out = list(a[:lead]); j = 0
    for i in range(span):
        while j < len(b) and j * span <= i * len(b):
            out.append(b[j]); j += 1
        out.append(a[lead + i])
    out += b[j:]
    out += a[lead + span:]
    return out

class K:
    def __init__(self, dbg=0, stop=None, opt=None):
        self.e = E()
        self.dbg = dbg; self.stop = stop
        self.nstamp = 0; self.stamp_names = []
        self.phase = 0
        self.tok = {}
        self.opt = opt or {}
        self.alt = []
        self.light = []
        self.nslow = 0
        self.early = True

    def stamp(self, name):
        if not self.dbg: return
        if self.dbg == 2 and not (name.endswith("pub") or name in ("issued", "end", "p1.0 kv gemm")): return
        e = self.e
        e(f"s_memtime {sr(sTS,2)}" if self.dbg != 3 else f"s_memrealtime {sr(sTS,2)}")
        e("s_waitcnt lgkmcnt(0)")
        for i, nm in enumerate(self.light):
            e(f"s_sub_u32 s{80+2*i}, s{80+2*i}, s{sT0S if self.dbg != 3 else sRT0}")
            e(f"v_writelane_b32 v{vSTAMP}, s{80+2*i}, {self.nstamp}")
            self.stamp_names.append(nm); self.nstamp += 1
        self.light = []
        e(f"s_sub_u32 s{sTS}, s{sTS}, s{sT0S if self.dbg != 3 else sRT0}")
        e(f"v_writelane_b32 v{vSTAMP}, s{sTS}, {self.nstamp}")
        self.stamp_names.append(name); self.nstamp += 1

    def lstamp(self, name):
        def f(tok):
            if self.dbg not in (1, 3) or not any(name.startswith(p) for p in self.opt.get("light", [])): return
            i = len(self.light); assert i < 8
            self.e.raw(f"    {'s_memtime' if self.dbg == 1 else 's_memrealtime'} s[{80+2*i}:{81+2*i}]")
            self.light.append(name)
        return [f]

    def run(self, groups):
        tok = None
        for g in groups:
            for x in g:
                if callable(x): x(tok)
                else:
                    t = self.e(x)
                    if t and t[0] == "vm": tok = t
        return tok
    def mark(self, name):
        def f(tok): self.tok[name] = tok
        return f
    def waitfor(self, name):
        return [lambda tok: self.e.wait(self.tok[name])]

    def spin(self, vaddr, sbase, phase):
        e = self.e
        L = e.label("POLL")
        e(f"s_mov_b32 s{sSPIN}, 0")
        e.place(L)
        e(f"buffer_load_dword v{vPOLL}, v{vaddr}, {sr(sWS)}, s{sbase} offen sc1")
        e(f"s_add_u32 s{sSPIN}, s{sSPIN}, 1")
        e(f"s_cmp_gt_u32 s{sSPIN}, 0x200000")
        e("s_cbranch_scc1 L_fail")
        e("s_waitcnt vmcnt(0)")
        e(f"v_cmp_gt_u32 vcc, {phase}, v{vPOLL}")
        e(f"s_cbranch_vccnz {L}")

    def slow(self):
        if self.dbg in (1, 3):
            self.e.raw(f"    s_or_b32 s13, s13, {1 << self.nslow}")
            self.nslow += 1
    def soft_issue(self, vaddr, sbase):
        return [f"buffer_load_dword v{vPOLL}, v{vaddr}, {sr(sWS)}, s{sbase} offen sc1"]
    def soft_check(self, vaddr, sbase, phase):
        def f(tok):
            e = self.e
            Lok, L = e.label("OK"), e.label("SP")
            e(f"v_cmp_gt_u32 vcc, {phase}, v{vPOLL}")
            e(f"s_cbranch_vccz {Lok}")
            self.slow()
            for x in f"""s_mov_b32 s{sSPIN}, 0
            {L}:
            buffer_load_dword v{vPOLL}, v{vaddr}, {sr(sWS)}, s{sbase} offen sc1
            s_add_u32 s{sSPIN}, s{sSPIN}, 1
            s_cmp_gt_u32 s{sSPIN}, 0x200000
            s_cbranch_scc1 L_fail
            s_waitcnt vmcnt(0)
            v_cmp_gt_u32 vcc, {phase}, v{vPOLL}
            s_cbranch_vccnz {L}
            {Lok}:""".split("\n"): e.raw("    " + x.strip())
        return [f]

    def st2(self, op, data, vaddr, soff, imm=0):
        o = f" offset:{imm}" if imm else ""
        t = f"{op} {data}, v{vaddr}, {sr(sWS)}, s{soff} offen{o}"
        if self.early: return [t + " sc1"]
        La, Lr = self.e.label("WT"), self.e.label("RT")
        self.alt += [f"{La}:", "    s_nop 4", f"    {t} sc1", f"    s_branch {Lr}"]
        return [lambda tok: self.e.settle(t), f"s_cmp_eq_u32 s{sPURE}, 0", f"s_cbranch_scc1 {La}", t, f"{Lr}:"]

    def flag_group(self, tokname):
        self.phase += 1
        return ([f"v_mov_b32 v{vT2}, {self.phase}"] + (self.waitfor(tokname) if tokname else []) + ["s_mov_b64 exec, 1"] +
                self.st2("buffer_store_dword", f"v{vT2}", vZ, sMYF) + ["s_mov_b64 exec, -1"]), self.phase

    def tau(self, L, i): return i if L == 0 else 6 - i
    def dma(self, n):
        assert n % 10 >= 3 and n != 13
        toff = self.tau(n // 10, n % 10 - 3) * TILE
        slot = (n % 4) * TILE
        g = []
        for i in range(8):
            x = []
            if i % 4 == 0:
                x.append(f"s_add_u32 m0, s{sM0W}, {slot + i*1024}")
                x.append(f"s_add_u32 s{sDMA}, s{sWG}, {toff + i*1024}")
            x.append(f"buffer_load_dwordx4 v{vL16}, {sr(sWS)}, s{sDMA} offen offset:{(i%4)*1024} lds")
            g.append(x)
        g.append([f"s_add_u32 m0, s{sM0Q}, {slot}", f"s_add_u32 s{sDMA}, s{sWG33}, {toff}",
                  f"buffer_load_dword v{vL4}, {sr(sWS)}, s{sDMA} offen lds", self.mark(f"tile{n}")])
        return g

    def park(self, n, i, T, store):
        A_, C_ = 128 + 32*i, 124 + i
        g = [[f"v_add_u32 v{T}, s{sM0W}, v{vSLOT + n%4}"],
             [f"s_add_u32 s{sT4}, s{sM0Q}, {(n%4)*TILE}", f"v_add_u32 v{T+1}, s{sT4}, v{vL4}"]]
        for k in range(8):
            g.append([f"ds_write_b128 v{T}, {ar(A_+4*k)} offset:{k*1024}" if store else f"ds_read_b128 {ar(A_+4*k)}, v{T} offset:{k*1024}"])
        g.append([f"ds_write_b32 v{T+1}, a{C_}" if store else f"ds_read_b32 a{C_}, v{T+1}"])
        return g

    def gather(self, items, sbase, sreg, flags="sc1", op="buffer_load_dwordx4"):
        g, cur = [], None
        for dst, vaddr, off in items:
            x = []
            if cur is None or not (0 <= off - cur < 4096):
                cur = off; x.append(f"s_add_u32 s{sreg}, s{sbase}, {off}")
            o = f" offset:{off-cur}" if off != cur else ""
            x.append(f"{op} {dst}, v{vaddr}, {sr(sWS)}, s{sreg} offen{o} {flags}".rstrip())
            g.append(x)
        return g

    def touch(self, sbase, off, nlines, vT2=vT2):
        m = (1 << nlines) - 1
        return [f"v_lshlrev_b32 v{vT2}, 3, v{vL16}", f"s_add_u32 s{sLD3}, s{sbase}, {off}",
                f"s_mov_b64 exec, {m}" if nlines < 32 else f"s_mov_b32 exec_hi, {m >> 32}",
                f"buffer_load_dword v{vT2}, v{vT2}, {sr(sWS)}, s{sLD3} offen sc1", "s_mov_b64 exec, -1"]

    def code_touch(self, lo, hi, vT2=vT2):
        return [f"s_lshr_b32 s{sLD3}, s2, 3", f"s_lshl_b32 s{sLD3}, s{sLD3}, 2", f"s_add_u32 s{sLD3}, s{sLD3}, s{sW}",
                f"s_lshl_b32 s{sLD3}, s{sLD3}, 9", f"s_add_u32 s{sLD3}, s{sLD3}, {lo}-L_pc",
                f"v_lshl_add_u32 v{vT2}, v{vL16}, 3, s{sLD3}", f"v_min_u32 v{vT2}, {hi}-L_pc-4, v{vT2}",
                "s_mov_b64 exec, 15", f"global_load_dword v{vT2}, v{vT2}, {sr(sPC,2)}", "s_mov_b64 exec, -1"]

    def lane(self, dst): self.e(f"v_lshrrev_b32 v{dst}, 4, v{vL16}")
    def row_addr(self, dst, tmp):
        return G(f"""v_and_b32 v{tmp}, 0x1f0, v{vL16}
        v_lshlrev_b32 v{tmp}, 6, v{tmp}
        v_lshrrev_b32 v{dst}, 9, v{vL16}
        v_lshl_add_u32 v{dst}, v{dst}, 4, v{tmp}""")

    def setup_rest(self):
        e = self.e
        self.lane(vT1)
        for i in range(4): e(f"v_add_u32 v{vSLOT+i}, {i*TILE}, v{vL16}")
        e(f"""
        v_mov_b32 v{vZ}, 0
        s_lshl_b32 s{sOUTO}, s{sC}, 1
        s_add_u32 s{sOUTO}, s{sOUTO}, s{sTH}
        s_lshl_b32 s{sOUTO}, s{sOUTO}, 16
        s_lshl_b32 s{sT0}, s{sFB}, 7
        s_lshl_b32 s{sT1}, s{sW}, 5
        s_add_u32 s{sOUTO}, s{sOUTO}, s{sT0}
        s_add_u32 s{sOUTO}, s{sOUTO}, s{sT1}
        s_lshl_b32 s{sT0}, s{sC}, 17
        s_lshl_b32 s{sT1}, s{sW}, 15
        s_lshl_b32 s{sT2}, s{sR}, 11
        s_add_u32 s{sOS}, s{sT0}, s{sT1}
        s_add_u32 s{sOS}, s{sOS}, s{sT2}
        s_add_u32 s{sOS}, s{sOS}, {OFF_O}
        s_lshl_b32 s{sM0W}, s{sW}, 13
        s_lshl_b32 s{sT0}, s{sW}, 4
        s_mov_b64 s[{sEXQ}:{sEXQ+1}], 0xffff
        s_lshl_b64 s[{sEXQ}:{sEXQ+1}], s[{sEXQ}:{sEXQ+1}], s{sT0}
        s_and_b32 s{sT0}, s{sW}, 1
        s_lshl_b32 s{sT0}, s{sT0}, 8
        v_xor_b32 v{vLX}, s{sT0}, v{vL16}
        s_lshr_b32 s{sT0}, s{sW}, 1
        s_lshl_b32 s{sT0}, s{sT0}, 10
        v_add_u32 v{vLX}, s{sT0}, v{vLX}
        v_xor_b32 v{vLX2}, 0x400, v{vLX}
        s_lshl_b32 s{sLF}, s{sC}, 9
        s_add_u32 s{sLF}, s{sLF}, {OFF_LF}
        s_lshl_b32 s{sT0}, s{sW}, 7
        s_lshl_b32 s{sT1}, s{sR}, 2
        s_add_u32 s{sMYF}, s{sLF}, s{sT0}
        s_add_u32 s{sMYF}, s{sMYF}, s{sT1}
        v_bfe_u32 v{vT0}, v{vT1}, 3, 2
        v_lshlrev_b32 v{vT0}, 7, v{vT0}
        v_and_b32 v{vC1}, 7, v{vT1}
        v_lshl_add_u32 v{vPX}, v{vC1}, 2, v{vT0}
        s_lshr_b32 s{sT0}, s{sW}, 1
        s_lshl_b32 s{sT0}, s{sT0}, 5
        v_add_u32 v{vPX}, s{sT0}, v{vPX}
        v_bfe_u32 v{vT0}, v{vT1}, 2, 1
        v_lshlrev_b32 v{vT0}, 7, v{vT0}
        v_and_b32 v{vC1}, 3, v{vT1}
        v_lshl_add_u32 v{vPO}, v{vC1}, 2, v{vT0}
        s_lshl_b32 s{sT0}, s{sTH}, 8
        s_lshl_b32 s{sT1}, s{sW}, 4
        s_add_u32 s{sT0}, s{sT0}, s{sT1}
        v_add_u32 v{vPO}, s{sT0}, v{vPO}
        s_mul_i32 s{sT0}, s{sC}, {4*XTG}
        s_add_u32 s{sT0}, s{sT0}, {OFF_X}
        s_mul_i32 s{sT1}, s{sW}, {XTG}
        s_add_u32 s{sXW}, s{sT0}, s{sT1}
        s_mul_i32 s{sT1}, s{sTH}, {2*XTG}
        s_add_u32 s{sT0}, s{sT0}, s{sT1}
        s_lshl_b32 s{sT1}, s{sFB}, 2
        s_add_u32 s{sT1}, s{sT1}, s{sW}
        s_lshl_b32 s{sT1}, s{sT1}, 10
        s_add_u32 s{sXS}, s{sT0}, s{sT1}
        s_lshl_b32 s{sT1}, s{sFB}, 8
        s_add_u32 s{sXST}, s{sT0}, s{sT1}
        s_add_u32 s{sXST}, s{sXST}, {32*1024}
        s_lshl_b32 s{sT0}, s{sC}, 17
        s_add_u32 s{sT0}, s{sT0}, {OFF_O}
        s_lshl_b32 s{sT1}, s{sTH}, 16
        s_add_u32 s{sOL}, s{sT0}, s{sT1}
        s_add_u32 s{sOL}, s{sOL}, s{sM0W}
        s_mul_i32 s{sT0}, s{sC}, {448*1024}
        s_add_u32 s{sT0}, s{sT0}, {OFF_H}
        s_mul_i32 s{sT1}, s{sW}, {112*1024}
        s_mul_i32 s{sT2}, s{sR}, {7*1024}
        s_add_u32 s{sHS}, s{sT0}, s{sT1}
        s_add_u32 s{sHS}, s{sHS}, s{sT2}
        s_mul_i32 s{sT1}, s{sTH}, {224*1024}
        s_mul_i32 s{sT2}, s{sW}, {28*1024}
        s_add_u32 s{sHL}, s{sT0}, s{sT1}
        s_add_u32 s{sHL}, s{sHL}, s{sT2}
        s_mul_i32 s{sWG}, s{sR}, {0 if self.opt.get("fakew") else 7*TILE}
        s_add_u32 s{sWG}, s{sWG}, {OFF_WGU}
        s_lshl_b32 s{sM0Q}, s{sW}, 8
        s_add_u32 s{sM0Q}, s{sM0Q}, 32768
        s_add_u32 s{sWG33}, s{sWG}, s{sM0Q}
        s_add_u32 s{sWG}, s{sWG}, s{sM0W}
        s_mul_i32 s{sWD_}, s{sFB}, {0 if self.opt.get("fakew") else 224*1024}
        s_mul_i32 s{sT0}, s{sW}, {56*1024}
        s_add_u32 s{sWD_}, s{sWD_}, s{sT0}
        s_add_u32 s{sWD_}, s{sWD_}, {OFF_WD}
        s_mul_i32 s{sWO_}, s{sFB}, {0 if self.opt.get("fakew") else 65536}
        s_lshl_b32 s{sT0}, s{sW}, 14
        s_add_u32 s{sWO_}, s{sWO_}, s{sT0}
        s_add_u32 s{sWO_}, s{sWO_}, {OFF_WO}
        s_mul_i32 s{sKVL}, s{sR}, {16*KVREC}
        s_add_u32 s{sKVL}, s{sKVL}, {OFF_KV}
        s_mul_i32 s{sT0}, s{sC}, {KVREC}
        s_add_u32 s{sKVS}, s{sKVL}, s{sT0}
        """)
        e(f"""
        v_and_b32 v{vT0}, 15, v{vT1}
        v_bfe_u32 v{vC1}, v{vT1}, 4, 1
        v_lshlrev_b32 v{vC1}, 2, v{vC1}
        v_sub_u32 v{vT0}, v{vT0}, v{vC1}
        v_mov_b32 v{vC1}, 0x3f803f80
        v_mov_b32 v{vTMP+1}, 0x3f80
        """)
        for k in range(4):
            q0 = 2 * k if k < 2 else 2 * k + 4
            e(f"""
            v_cmp_eq_u32 vcc, {q0}, v{vT0}
            v_accvgpr_write_b32 a{aONE+k}, v{vC1}
            v_cndmask_b32 v{vTMP}, 0, v{vTMP+1}, vcc
            v_cmp_eq_u32 vcc, {q0+1}, v{vT0}
            v_cndmask_b32 v{vTMP}, v{vTMP}, 1.0, vcc
            v_accvgpr_write_b32 a{aSEL+k}, v{vTMP}
            """)

    STG = 2 * TILE
    XST = 3 * TILE
    vXA, vWA, vXR, vTR, vF1, vUA, vUT, vUC, vTG = 40, 45, 46, 50, 53, 56, 57, 58, 60
    sXB, sWB, sW4K, sW1K = 0, 1, 53, 88

    def unit_decode(self):
        e = self.e
        PWO, PG, PU, PD = sPTR+6, sPTR+10, sPTR+12, sPTR+14
        sSTR, sSO, sGU = sT0, sT1, sT5
        Ld, Lo, Lgo = [e.label("U") for _ in range(3)]
        def setsrc(pa, pb, size):
            e(f"""
            s_mov_b32 s{sSA}, s{pa}
            s_mov_b32 s{sSA+1}, s{pa+1}
            s_mov_b32 s{sSA+2}, {size}
            s_mov_b32 s{sSB}, s{pb}
            s_mov_b32 s{sSB+1}, s{pb+1}
            """)
        e(f"""
        s_cmp_ge_u32 s2, 168
        s_cbranch_scc1 {Lo}
        s_cmp_ge_u32 s2, 112
        s_cbranch_scc1 {Ld}
        """)
        setsrc(PG, PU, 512*3584)
        e(f"""
        s_mov_b32 s{sSTR}, 3584
        s_and_b32 s{sUCS}, s2, 3
        s_lshr_b32 s{sLD}, s2, 2
        s_lshl_b32 s{sSO}, s{sLD}, 7
        s_lshl_b32 s{sLD}, s{sLD}, 2
        s_add_u32 s{sLD}, s{sLD}, s{sW}
        s_mul_i32 s{sUDST}, s{sLD}, {TILE}
        s_add_u32 s{sUDST}, s{sUDST}, {OFF_WGU}
        s_mov_b32 s{sUSTEP}, 1024
        s_mov_b32 s{sGU}, 1
        s_branch {Lgo}
        """)
        for lab, ptr, size, u0, off, fbs in ((Ld, PD, 1792*1024, 112, OFF_WD, 224*1024), (Lo, PWO, 512*1024, 168, OFF_WO, 65536)):
            e.place(lab)
            setsrc(ptr, ptr, size)
            e(f"""
            s_mov_b32 s{sSTR}, 1024
            s_sub_u32 s{sLD}, s2, {u0}
            s_lshr_b32 s{sUCS}, s{sLD}, 2
            s_and_b32 s{sLD}, s{sLD}, 3
            s_lshl_b32 s{sSO}, s{sLD}, 8
            s_lshl_b32 s{sLD}, s{sLD}, 2
            s_add_u32 s{sLD}, s{sLD}, s{sW}
            s_lshr_b32 s{sLD2}, s{sLD}, 1
            s_mul_i32 s{sUDST}, s{sLD2}, {fbs}
            s_and_b32 s{sLD}, s{sLD}, 1
            s_lshl_b32 s{sLD}, s{sLD}, 10
            s_add_u32 s{sUDST}, s{sUDST}, s{sLD}
            s_add_u32 s{sUDST}, s{sUDST}, {off}
            s_mov_b32 s{sUSTEP}, 2048
            s_mov_b32 s{sGU}, 0
            """)
            if lab == Ld: e(f"s_branch {Lgo}")
        e.place(Lgo)
        e(f"""
        s_cmp_ge_u32 s2, {self.opt.get("maxunit", 184)}
        s_cselect_b32 s{sSA+2}, 0, s{sSA+2}
        s_mov_b32 s{sSB+2}, s{sSA+2}
        v_lshrrev_b32 v{self.vUA}, 7, v{vL16}
        v_mul_lo_u32 v{self.vUA}, v{self.vUA}, s{sSTR}
        v_and_b32 v{vT0}, 0x70, v{vL16}
        v_add_u32 v{self.vUA}, v{self.vUA}, v{vT0}
        s_lshl_b32 s73, s{sUCS}, 2
        s_add_u32 s73, s73, s{sW}
        s_lshl_b32 s73, s73, 5
        s_mul_i32 s73, s73, s{sSTR}
        s_add_u32 s73, s73, s{sSO}
        s_cmp_eq_u32 s{sGU}, 1
        s_cselect_b32 s67, 0, 128
        s_add_u32 s67, s67, s73
        s_lshl_b32 s{sT3}, s{sSTR}, 3
        """)
    def unit_dma(self):
        e = self.e
        for i in range(4):
            e(f"s_add_u32 m0, s{self.sW4K}, {self.STG + i*1024}")
            e(f"buffer_load_dwordx4 v{self.vUA}, {sr(sSA)}, s73 offen lds")
            e(f"s_add_u32 m0, s{self.sW4K}, {self.STG + 16384 + i*1024}")
            e(f"buffer_load_dwordx4 v{self.vUA}, {sr(sSB)}, s67 offen lds")
            if i < 3:
                e(f"s_add_u32 s73, s73, s{sT3}")
                e(f"s_add_u32 s67, s67, s{sT3}")
    def unit_addr(self):
        e = self.e
        sGU = sT5
        self.lane(vT1)
        e(f"""
        v_bfe_u32 v{self.vUT}, v{vT1}, 2, 2
        v_lshrrev_b32 v{vT0}, 5, v{vT1}
        v_lshl_add_u32 v{self.vUT}, v{vT0}, 2, v{self.vUT}
        v_lshlrev_b32 v{self.vUT}, 7, v{self.vUT}
        v_and_b32 v{vT0}, 3, v{vT1}
        v_lshl_add_u32 v{self.vUT}, v{vT0}, 3, v{self.vUT}
        v_bfe_u32 v{vT0}, v{vT1}, 4, 1
        s_cmp_eq_u32 s{sGU}, 1
        s_cselect_b32 s{sLD}, 16384, 32
        v_mul_lo_u32 v{vT0}, v{vT0}, s{sLD}
        v_add_u32 v{self.vUT}, v{self.vUT}, v{vT0}
        s_lshr_b32 s{sLD}, s{sW}, 1
        s_lshl_b32 s{sLD}, s{sLD}, 14
        s_and_b32 s{sLD2}, s{sW}, 1
        s_lshl_b32 s{sLD2}, s{sLD2}, 6
        s_add_u32 s{sLD}, s{sLD}, s{sLD2}
        s_lshl_b32 s{sLD2}, s{sW}, 5
        s_cmp_eq_u32 s{sGU}, 1
        s_cselect_b32 s{sLD}, s{sLD2}, s{sLD}
        s_add_u32 s{sLD}, s{sLD}, {self.STG}
        v_add_u32 v{self.vUT}, s{sLD}, v{self.vUT}
        s_mov_b32 s{sSA}, s{sPTR+20}
        s_mov_b32 s{sSA+1}, s{sPTR+21}
        s_mov_b32 s{sSB}, s{sPTR+20}
        s_mov_b32 s{sSB+1}, s{sPTR+21}
        s_cmp_eq_u32 s{sSA+2}, 0
        s_cselect_b32 s{sSA+2}, 0, {WS_SIZE}
        s_cmp_eq_u32 s{sGU}, 1
        s_cselect_b32 s{sSB+2}, s{sSA+2}, 0
        s_lshr_b32 s{sLD}, s{sUCS}, 1
        s_lshl_b32 s{sLD}, s{sLD}, 9
        s_and_b32 s{sLD2}, s{sUCS}, 1
        s_lshl_b32 s{sLD2}, s{sLD2}, 3
        s_add_u32 s{sLD}, s{sLD}, s{sLD2}
        s_add_u32 s{sLD}, s{sLD}, s{sUDST}
        s_add_u32 s67, s{sLD}, 32768
        s_lshl_b32 s{sLD}, s{sUCS}, 3
        s_mul_i32 s{sLD}, s{sLD}, s{sUSTEP}
        s_add_u32 s{sUDST}, s{sLD}, s{sUDST}
        """)
    def hilo(self, dst, src, tmp):
        return G(f"""v_cvt_pk_bf16_f32 v{dst}, v{src}, v{src}
        v_and_b32 v{tmp}, 0xffff0000, v{dst}
        v_sub_f32 v{tmp}, v{src}, v{tmp}
        v_cvt_pk_bf16_f32 v{dst+1}, v{tmp}, v{tmp}""")
    def unit_read(self):
        e = self.e
        CS = vSLAB + 112
        for s in range(8):
            e(f"ds_read_b64_tr_b16 {ar(4*s,2)}, v{self.vUT} offset:{s*2048}")
            e(f"ds_read_b64_tr_b16 {ar(4*s+2,2)}, v{self.vUT} offset:{s*2048 + 1024}")
        for s in range(8):
            e(f"v_mfma_f32_32x32x16_bf16 {vr(CS,16)}, {ar(aONE)}, {ar(4*s)}, {'0' if s == 0 else vr(CS,16)}")
    def unit_store(self):
        e = self.e
        for s in range(8):
            e(f"buffer_store_dwordx4 {ar(4*s)}, v{vL16}, {sr(sSA)}, s{sUDST} offen sc1")
            if s < 7: e(f"s_add_u32 s{sUDST}, s{sUDST}, s{sUSTEP}")
        self.run(self.hilo(self.vUC, vSLAB + 112, self.vUA))
        e(f"""
        s_mov_b32 exec_hi, 0
        buffer_store_dwordx2 {vr(self.vUC,2)}, v{vL16}, {sr(sSB)}, s67 offen sc1
        s_mov_b64 exec, -1
        """)

    def gflag(self, off, shift):
        e = self.e
        L = e.label("GF")
        for x in f"""s_cmp_eq_u32 s{sW}, 0
        s_cbranch_scc0 {L}
        s_lshl_b32 s{sLD3}, s2, {shift}
        s_add_u32 s{sLD3}, s{sLD3}, {off}
        s_mov_b64 exec, 1
        buffer_store_dwordx2 {vr(self.vTG,2)}, v{vZ}, {sr(sWS)}, s{sLD3} offen sc1
        s_mov_b64 exec, -1
        {L}:""".split("\n"): e.raw("    " + x.strip())

    def tagcheck(self, F, vaddr, soff):
        e = self.e
        Lp, Lok = e.label("TG"), e.label("TGOK")
        e(f"s_mov_b32 s{sSPIN}, 0")
        e.wait(e.pend.get(("v", F)))
        e.place(Lp)
        e(f"""
        v_and_b32 v{vT0}, 0xfffffff0, v{F+1}
        v_cmp_ne_u32 vcc, s{sTAG}, v{F}
        v_cmp_ne_u32 {sr(sT2,2)}, s{sTAG2}, v{vT0}
        s_or_b64 {sr(sT2,2)}, vcc, {sr(sT2,2)}
        s_cbranch_scc0 {Lok}
        """)
        self.slow()
        for x in f"""buffer_load_dwordx2 {vr(F,2)}, v{vaddr}, {sr(sWS)}, s{soff} offen sc1
        s_add_u32 s{sSPIN}, s{sSPIN}, 1
        s_cmp_gt_u32 s{sSPIN}, 0x80000
        s_cbranch_scc1 L_fail
        s_waitcnt vmcnt(0)
        s_branch {Lp}
        {Lok}:""".split("\n"): e.raw("    " + x.strip())

    def x_chunk(self, c):
        g = [[f"s_add_u32 s{sDMA}, s{sFB}, {c}", f"s_and_b32 s{sDMA}, s{sDMA}, 7", f"s_lshl_b32 s{sDMA}, s{sDMA}, 7",
              f"s_add_u32 s{sDMA}, s{sDMA}, s{self.sXB}", f"s_add_u32 m0, s{self.sW4K}, {self.XST + (c % 3)*16384}"]]
        for i in range(4):
            g.append([f"buffer_load_dwordx4 v{self.vXA+i}, {sr(sOUT)}, s{sDMA} offen offset:{i*1024} lds", self.mark(f"x{c}")])
        return g
    def w_chunk(self, c, tiles):
        g = []
        for n, t in enumerate(tiles):
            part = (1024, 2048, 0)[t]
            x = []
            if n == 0:
                x = [f"s_add_u32 s{sROT}, s{sFB}, {c}", f"s_and_b32 s{sROT}, s{sROT}, 7", f"s_mul_i32 s{sROT}, s{sROT}, {64*3072}",
                     f"s_add_u32 s{sROT}, s{sROT}, s{self.sWB}"]
            x += [f"s_add_u32 m0, s{self.sW1K}, {t*TILE + c*4096}", f"s_add_u32 s{sDMA}, s{sROT}, {part}",
                  f"buffer_load_dwordx4 v{self.vWA}, {sr(sSQ)}, s{sDMA} offen lds", self.mark(f"w{t}_{c}")]
            g.append(x)
        return g

    def startup(self):
        e = self.e
        PX, PQKV, PPHI = sPTR, sPTR+2, sPTR+4
        e(f"""
        s_cmp_ge_u32 s2, 256
        s_cbranch_scc1 L_end
        """)
        if self.dbg:
            e(f"s_memtime {sr(sT0S,2)}")
            e(f"s_memrealtime {sr(sRT0,2)}")
        XA = self.vXA
        e(f"""
        s_load_dwordx16 s[{sPTR}:{sPTR+15}], s[0:1], 0
        s_load_dwordx4 s[{sPTR+16}:{sPTR+19}], s[0:1], 64
        s_load_dwordx2 s[{sPTR+20}:{sPTR+21}], s[0:1], 80
        v_lshrrev_b32 v{vT0}, 6, v0
        v_and_b32 v{vT1}, 63, v0
        v_readfirstlane_b32 s{sW}, v{vT0}
        v_lshlrev_b32 v{vL16}, 4, v{vT1}
        v_lshlrev_b32 v{vL4}, 2, v{vT1}
        s_getpc_b64 {sr(sPC,2)}
        L_pc:
        """)
        self.run([self.code_touch("L_pc", "L_end")])
        e(f"""
        s_and_b32 s{sC}, s2, 7
        s_lshl_b32 s{sC}, s{sC}, 1
        s_lshr_b32 s{sT0}, s2, 7
        s_add_u32 s{sC}, s{sC}, s{sT0}
        s_lshr_b32 s{sR}, s2, 3
        s_and_b32 s{sR}, s{sR}, 15
        s_lshr_b32 s{sTH}, s{sR}, 3
        s_add_u32 s{sFB}, s{sR}, s{sC}
        s_and_b32 s{sFB}, s{sFB}, 7
        s_lshl_b32 s{self.sW4K}, s{sW}, 12
        v_lshrrev_b32 v{vT0}, 3, v{vT1}
        v_lshrrev_b32 v{vC1}, 4, v{vT1}
        v_xor_b32 v{vC1}, v{vC1}, v{vT1}
        v_and_b32 v{vC1}, 7, v{vC1}
        v_lshlrev_b32 v{vC1}, 4, v{vC1}
        v_lshl_add_u32 v{XA}, v{vT0}, 10, v{vC1}
        v_xor_b32 v{XA+1}, 64, v{XA}
        v_add_u32 v{XA+2}, {2*7168}, v{XA}
        v_add_u32 v{XA+3}, {3*7168}, v{XA+1}
        v_add_u32 v{XA+1}, 7168, v{XA+1}
        v_lshrrev_b32 v{vT0}, 2, v{vT1}
        v_mul_u32_u24 v{vT0}, 3072, v{vT0}
        v_and_b32 v{vC1}, 0x30, v{vL16}
        v_add_u32 v{self.vWA}, v{vT0}, v{vC1}
        s_mov_b32 s{sOUT+2}, 0x200000
        s_mov_b32 s{sOUT+3}, 0x20000
        s_mov_b32 s{sSQ+2}, {512*3072}
        s_mov_b32 s{sSQ+3}, 0x20000
        s_mov_b32 s{sSA+2}, 16384
        s_mov_b32 s{sSA+3}, 0x20000
        s_mov_b32 s{sSB+3}, 0x20000
        s_mov_b32 s{sWS+2}, {WS_SIZE}
        s_mov_b32 s{sWS+3}, 0x20000
        s_lshl_b32 s{sT0}, s{sC}, 2
        s_add_u32 s{sT0}, s{sT0}, s{sW}
        s_mul_i32 s{sT1}, s{sW}, {16*3072}
        s_lshl_b32 s{sT2}, s{sR}, 6
        s_waitcnt lgkmcnt(0)
        s_lshl_b32 s{self.sXB}, s{sT0}, 15
        s_add_u32 s{self.sWB}, s{sT1}, s{sT2}
        s_lshl_b32 s{self.sW1K}, s{sW}, 10
        s_mov_b32 s{sOUT}, s{PX}
        s_mov_b32 s{sOUT+1}, s{PX+1}
        s_mov_b32 s{sSQ}, s{PQKV}
        s_mov_b32 s{sSQ+1}, s{PQKV+1}
        """)
        if self.dbg: e(f"v_mov_b32 v{vSTAMP}, 0"); e("s_mov_b32 s13, 0")
        self.run(self.x_chunk(0) + self.w_chunk(0, [0, 1]))
        e(f"""
        s_load_dword s{sEP}, s[{sPTR+20}:{sPTR+21}], {OFF_EPOCH}
        s_mov_b32 s{sSA}, s{PPHI}
        s_mov_b32 s{sSA+1}, s{PPHI+1}
        s_mov_b32 s{sWS}, s{sPTR+20}
        s_mov_b32 s{sWS+1}, s{sPTR+21}
        s_lshl_b32 s{sT0}, s{sW}, 8
        s_add_u32 m0, s{sT0}, {KVB + 2048}
        s_lshl_b32 s{sT1}, s{sR}, 10
        s_add_u32 s{sT0}, s{sT0}, s{sT1}
        """)
        self.tok["phi"] = e(f"buffer_load_dword v{vL4}, {sr(sSA)}, s{sT0} offen lds")
        e(f"buffer_load_dword v{vPOLL}, v{self.vWA}, {sr(sSQ)}, s{sROT} offen")
        self.unit_decode()
        e(f"s_getreg_b32 s{sXCC}, hwreg(HW_REG_XCC_ID, 0, 4)")
        self.setup_rest()
        XR = self.vXR
        e(f"""
        v_and_b32 v{vT0}, 0x1f0, v{vL16}
        v_lshlrev_b32 v{vT0}, 3, v{vT0}
        v_lshrrev_b32 v{vC1}, 1, v{vT1}
        v_lshrrev_b32 v{vC2}, 5, v{vT1}
        v_xor_b32 v{vC1}, v{vC1}, v{vC2}
        v_and_b32 v{vC1}, 7, v{vC1}
        v_lshl_add_u32 v{vT0}, v{vC1}, 4, v{vT0}
        s_add_u32 s{sT0}, s{self.sW4K}, {self.XST}
        """)
        for j in range(4):
            e(f"v_xor_b32 v{XR+j}, {j << 5}, v{vT0}")
            e(f"v_add_u32 v{XR+j}, s{sT0}, v{XR+j}")
        RA, PA = 54, 55
        e(f"""
        s_lshl_b32 s{sT0}, s{sW}, 5
        v_xor_b32 v{RA}, s{sT0}, v{vT0}
        s_lshl_b32 s{sT0}, s{sTH}, 13
        s_add_u32 s{sT0}, s{sT0}, {self.XST}
        v_add_u32 v{RA}, s{sT0}, v{RA}
        v_and_b32 v{vT0}, 1, v{vT1}
        v_lshlrev_b32 v{PA}, 9, v{vT0}
        v_lshl_add_u32 v{PA}, v{vC2}, 7, v{PA}
        v_bfe_u32 v{vT0}, v{vT1}, 2, 2
        v_lshl_add_u32 v{PA}, v{vT0}, 5, v{PA}
        v_bfe_u32 v{vT0}, v{vT1}, 4, 1
        v_lshl_add_u32 v{PA}, v{vT0}, 4, v{PA}
        v_bfe_u32 v{vT0}, v{vT1}, 1, 1
        v_lshl_add_u32 v{PA}, v{vT0}, 3, v{PA}
        v_add_u32 v{PA}, {KVB + 2048}, v{PA}
        v_and_b32 v{vT0}, 15, v{vT1}
        v_lshlrev_b32 v{self.vF1}, 3, v{vT0}
        s_and_b32 s{sT0}, s2, 0x87
        v_add_u32 v{self.vF1}, s{sT0}, v{self.vF1}
        v_lshlrev_b32 v{self.vF1}, 7, v{self.vF1}
        """)
        self.run(self.tr_addr([self.vTR, self.vTR+1, self.vTR+2], [0, 1, 2], 0, vT0))
        e(f"v_add_u32 v{vC1}, s{self.sW1K}, v{self.vTR}")
        e(f"v_add_u32 v{vC2}, s{self.sW1K}, v{self.vTR+1}")
        S = vSLAB + 96
        e(f"""
        v_mov_b32 v{S}, -1
        v_mov_b32 v{S+1}, -1
        v_mov_b32 v{S+2}, -1
        v_mov_b32 v{S+3}, -1
        s_mul_i32 s{sLD}, s{sW}, 544
        s_add_u32 s{sLD}, s{sLD}, s{sKVS}
        s_add_u32 s{sLD2}, s{sLD}, {256*KVREC}
        s_mov_b32 exec_hi, 3
        buffer_store_dwordx4 {vr(S)}, v{vL16}, {sr(sWS)}, s{sLD} offen sc1
        buffer_store_dwordx4 {vr(S)}, v{vL16}, {sr(sWS)}, s{sLD2} offen sc1
        s_mov_b64 exec, 1
        buffer_store_dword v{vZ}, v{vZ}, {sr(sWS)}, s{sMYF} offen sc1
        s_mov_b64 exec, -1
        s_mul_i32 s{sTAG}, s{sEP}, 0x9e3779b1
        s_add_u32 s{sTAG}, s{sTAG}, 0x7f4a7c15
        s_mul_i32 s{sTAG2}, s{sEP}, 0x85ebca6b
        s_add_u32 s{sTAG2}, s{sTAG2}, 0xc2b2ae35
        s_and_b32 s{sTAG2}, s{sTAG2}, 0xfffffff0
        s_or_b32 s{sT0}, s{sTAG2}, s{sXCC}
        v_mov_b32 v{self.vTG}, s{sTAG}
        v_mov_b32 v{self.vTG+1}, s{sT0}
        """)
        self.stamp("setup")
        if self.opt.get("g1first", 0): self.run(self.w_chunk(1, [0, 1]) + self.x_chunk(1) + self.w_chunk(2, [0, 1]))
        self.unit_dma()
        self.unit_addr()
        self.stat_addr()
        self.stamp("issued")

    def colsum_out(self, accs, slots):
        g = [[f"s_lshr_b32 s{sT0}, s{sW}, 1", f"s_lshl_b32 s{sT0}, s{sT0}, 9"],
             [f"s_and_b32 s{sT1}, s{sW}, 1", f"s_lshl_b32 s{sT1}, s{sT1}, 3", f"s_add_u32 s{sT0}, s{sT0}, s{sT1}"]]
        for a_, n in zip(accs, slots):
            T = a_ + 2
            g += self.hilo(T, a_, T + 2)
            g += [[f"v_add_u32 v{T+2}, s{sT0}, v{vSLOT + n}"],
                  ["s_mov_b32 exec_hi, 0", f"ds_write_b64 v{T+2}, {vr(T,2)} offset:32768", "s_mov_b64 exec, -1"]]
        return g

    def p1_first(self, AK, AV, ST, post, addr):
        e = self.e
        CK, CV = vACC + 32, vACC + 48
        TR, XR, RA, PA = self.vTR, self.vXR, 54, 55
        grp = lambda c: self.x_chunk(c) + (self.w_chunk(c + 1, [0, 1]) if c < 7 else [])
        last = lambda c: self.tok[f"w1_{c+1}" if c < 7 else "x7"]
        XT, U = vSLAB + 64, vSLAB + 72
        for c in range(8):
            if c == 0:
                e.wait(self.tok["phi"])
            else:
                e.wait(last(c))
            if c == 2: e.wait(self.tok["sst"])
            if e.lg: e("s_waitcnt lgkmcnt(0)")
            e("s_barrier")
            self.run([self.lstamp(f"p1.0 c{c}")] if c in (0, 1, 2, 5) else [])
            if c == 2: self.gflag(OFF_F1, 7)
            if c == (6 if self.opt.get("g1first", 0) else 5): self.gflag(OFF_F2, 3); e(f"s_mov_b32 s{sLD3}, {OFF_F1}")
            for j in range(4):
                e(f"ds_read_b128 {vr(vSLAB + 16*c + 4*j)}, v{XR+j} offset:{(c % 3)*16384}")
            st = []
            if c == 0:
                e(f"ds_read_b128 {vr(XT)}, v{RA}")
                e(f"ds_read_b128 {vr(XT+4)}, v{RA} offset:4096")
                e(f"ds_read_b64_tr_b16 {vr(U+24,2)}, v{PA}")
                e(f"ds_read_b64_tr_b16 {vr(U+26,2)}, v{PA} offset:256")
                fill = []
                for tt in range(2):
                    P = XT + 4*tt
                    fill += [[f"v_permlane32_swap_b32 v{P}, v{P+2}"], [f"v_permlane32_swap_b32 v{P+1}, v{P+3}"]]
                    fill += self.unpack(P, U + 12*tt) + self.stat_part(U + 12*tt, tt) + self.keep(U + 12*tt, tt)
                fill += [[f"v_and_b32 v{XT}, 64, v{vL16}"], [f"v_cmp_eq_u32 vcc, 0, v{XT}"]]
                for k in range(4):
                    fill += [[f"v_cndmask_b32 v{XT}, 0, v{U+24+k}, vcc", f"v_cndmask_b32 v{XT+1}, v{U+24+k}, 0, vcc",
                              f"v_accvgpr_write_b32 a{aPHI+k}, v{XT}", f"v_accvgpr_write_b32 a{aPHI+4+k}, v{XT+1}"]]
                st = [(fill, 0, 9)]
            if c == 1:
                self.run(self.stat_read(0, U) + self.stat_read(1, U + 4) + self.stat_fin(0, U) + self.stat_fin(1, U + 4) + grp(3))
            if c == 6:
                self.tagcheck(vT2, self.vF1, sLD3)
                e(f"""
                s_or_b32 s{sT2}, s{sTAG2}, s{sXCC}
                v_cmp_ne_u32 vcc, s{sT2}, v{vT2+1}
                s_cmp_eq_u64 vcc, 0
                s_cselect_b32 s{sPURE}, 1, 0
                """)
                self.run(self.stats_loads(ST))
                st = [(addr, 0, 9)]
            cs = lambda cc: [(self.trr(vC1, 4*cc, 256), None, CK, cc == 0), (self.trr(vC2, 4*cc, 256), None, CV, cc == 0)]
            seq = cs(0) if c == 0 else (cs(1) if c == 1 else []) + (cs(c + 1) if c < 7 else [])
            ks = list(range(4*c, 4*c + 4))
            if c == 7:
                st = [(self.stats_groups(ST) + post, 0, 5)]
                ks.append(32)
            seq += self.kseq([0, 1], [AK, AV], ks, ([TR, TR+1], 256))
            self.gemm(seq, self.spread(len(seq), *st))
            cu = 2 if self.opt.get("g1first", 0) else 1
            if c == 0: self.run((self.w_chunk(1, [0, 1]) + grp(1) if cu == 1 else []) + grp(2))
            if c == cu:
                self.unit_read(); self.run(grp(c + 3)); self.unit_store()
            elif c in (1, 2, 3): self.run(grp(c + 3))
            if c == 4:
                e(f"s_mov_b32 s{sLD3}, {OFF_F1}")
                e(f"buffer_load_dwordx2 {vr(vT2,2)}, v{self.vF1}, {sr(sWS)}, s{sLD3} offen sc1")
                self.run(grp(7))
            if c == 6:
                self.run(self.colsum_out([CK, CV], [0, 1]))
                for cc in range(8): self.run(self.w_chunk(cc, [2]))
        e(f"s_mov_b32 s{sOUT}, s{sPTR+16}")
        e(f"s_mov_b32 s{sOUT+1}, s{sPTR+17}")
        self.early = False

    vSW, vSR = vT0, vT1
    def stat_addr(self):
        e = self.e
        e(f"s_lshl_b32 s{sT0}, s{sW}, 8")
        e(f"s_add_u32 s{sT0}, s{sT0}, {KVB}")
        e(f"v_add_u32 v{self.vSW}, s{sT0}, v{vL4}")
        e(f"v_add_u32 v{self.vSR}, {KVB}, v{vL4}")
    def x_store(self, P, tt):
        return [[f"s_add_u32 s{sLD2}, s{sXS}, {tt*XTG}"] + self.st2("buffer_store_dwordx4", vr(P), vL16, sLD2) + [self.mark("xst")]]
    def unpack(self, P, U):
        g = []
        for k in range(4):
            g.append([f"v_lshlrev_b32 v{U+2*k}, 16, v{P+k}"])
            g.append([f"v_and_b32 v{U+2*k+1}, 0xffff0000, v{P+k}"])
        return g
    def keep(self, U, tt):
        return [[f"v_accvgpr_write_b32 a{aRES+8*tt+k}, v{U+k}"] for k in range(8)]
    def stat_part(self, U, tt):
        S, Q = U + 8, U + 10
        g = [[pk("v_pk_add_f32", S, U, U+2)], [pk("v_pk_mul_f32", Q, U, U)],
             [pk("v_pk_add_f32", S, S, U+4)], [pk("v_pk_fma_f32", Q, U+2, U+2, Q)],
             [pk("v_pk_add_f32", S, S, U+6)], [pk("v_pk_fma_f32", Q, U+4, U+4, Q)],
             [f"v_add_f32 v{S}, v{S}, v{S+1}"], [pk("v_pk_fma_f32", Q, U+6, U+6, Q)],
             [f"v_add_f32 v{Q}, v{Q}, v{Q+1}"],
             [f"v_permlane32_swap_b32 v{S}, v{Q}"],
             [f"v_add_f32 v{S}, v{S}, v{Q}"],
             [f"ds_write_b32 v{self.vSW}, v{S} offset:{tt*1024}"]]
        return g
    def stat_read(self, tt, T):
        return [[f"ds_read2st64_b32 {vr(T,2)}, v{self.vSR} offset0:{4*tt} offset1:{4*tt+1}"],
                [f"ds_read2st64_b32 {vr(T+2,2)}, v{self.vSR} offset0:{4*tt+2} offset1:{4*tt+3}"]]
    def stat_fin(self, tt, T):
        return [[pk("v_pk_add_f32", T, T, T+2)], [f"v_add_f32 v{T}, v{T}, v{T+1}"],
                [f"s_add_u32 s{sLD2}, s{sXST}, {tt*XTG}", f"s_mov_b64 exec, {sr(sEXQ,2)}"] +
                self.st2("buffer_store_dword", f"v{T}", vL4, sLD2) + [self.mark("sst"), "s_mov_b64 exec, -1"]]

    def stats_loads(self, B):
        return self.gather([(f"v{B+k}", vL4, 32*1024 + 256*k) for k in range(8)], sXW, sLD2, op="buffer_load_dword")
    def stats_groups(self, B):
        return [[pk("v_pk_add_f32", B, B, B+2)], [pk("v_pk_add_f32", B+4, B+4, B+6)], [pk("v_pk_add_f32", B, B, B+4)]] + G(f"""
        v_add_f32 v{B}, v{B}, v{B+1}
        v_mov_b32 v{B+1}, v{B}
        v_permlane32_swap_b32 v{B}, v{B+1}
        v_mul_f32 v{B}, {f2u(-1.0/512)}, v{B}
        v_mul_f32 v{B+1}, {f2u(1.0/512)}, v{B+1}
        v_fma_f32 v{B+1}, -v{B}, v{B}, v{B+1}
        v_cvt_pk_bf16_f32 v{B+2}, v{B}, v{B}
        v_max_f32 v{B+1}, 0, v{B+1}
        v_and_b32 v{B+3}, 0xffff0000, v{B+2}
        v_add_f32 v{B+1}, {f2u(1e-5)}, v{B+1}
        v_sub_f32 v{B+4}, v{B}, v{B+3}
        v_rsq_f32 v{vC1}, v{B+1}
        v_cvt_pk_bf16_f32 v{vMEAN}, v{B+3}, v{B+4}
        v_cvt_pk_bf16_f32 v{vMEAN+1}, v{B+3}, v{B+4}
        v_cvt_pk_bf16_f32 v{vMEAN+2}, v{B+3}, v{B+4}
        v_cvt_pk_bf16_f32 v{vMEAN+3}, v{B+3}, v{B+4}
        v_mul_f32 v{vC2}, v{B+1}, v{vC1}
        """)
    def slab_loads(self, rot=False):
        g = self.gather([(vr(vSLAB + 4*s), vL16, 1024*s) for s in range(32)], sXW, sLD)
        if rot:
            for c in range(8):
                g[4*c] = ([f"s_lshl_b32 s{sROT}, s{sFB}, 12"] if c == 0 else
                          [f"s_add_u32 s{sROT}, s{sROT}, 4096", f"s_and_b32 s{sROT}, s{sROT}, 0x7fff"]) + \
                         [f"s_add_u32 s{sLD}, s{sXW}, s{sROT}", g[4*c][-1]]
        return g

    NR, PF = 5, 4
    def gemm(self, seq, gaps, pre=None):
        e = self.e
        NR, PF = self.NR, self.PF
        toks = {}
        def rd(j):
            d = vWF + 4*(j % NR)
            for op, o, n, base, off in seq[j][0]:
                toks[j] = e(f"{op} {vr(d + o, n)}, v{base} offset:{off}")
        for j in range(min(PF + 1, len(seq))): rd(j)
        if pre: pre()
        for j, (_, b, acc, first) in enumerate(seq):
            if j % 2 == 0 and j > 0:
                e.wait(toks[min(j + 1, len(seq) - 1)], e.pend.get(("v", b)))
            f = vr(vWF + 4*(j % NR))
            ab = f"{f}, {vr(b)}" if b is not None else f"{ar(aONE)}, {f}"
            e(f"v_mfma_f32_32x32x16_bf16 {vr(acc,16)}, {ab}, {'0' if first else vr(acc,16)}")
            if j + PF + 1 < len(seq): rd(j + PF + 1)
            if j < len(gaps): self.run(gaps[j])
        for g in gaps[len(seq):]: self.run(g)
    @staticmethod
    def trr(base, s, second):
        return [("ds_read_b64_tr_b16", 0, 2, base, s*1024), ("ds_read_b64_tr_b16", 2, 2, base, s*1024 + second)]
    def kseq(self, tiles, accs, ksteps, tr=None):
        out = []
        for s in ksteps:
            for i, (t, a) in enumerate(zip(tiles, accs)):
                rd = self.trr(tr[0][i], s, tr[1]) if (tr and s < 32) else [("ds_read_b128", 0, 4, vSLOT + t % 4, s*1024)]
                out.append((rd, vSLAB + 4*s if s < 32 else vMEAN, a, s == 0))
        return out
    def tr_addr(self, regs, slots, L, tmp):
        g = G(f"""
        v_lshrrev_b32 v{tmp}, 9, v{vL16}
        v_lshlrev_b32 v{regs[0]}, {9 if L == 0 else 8}, v{tmp}
        v_and_b32 v{tmp}, 0xc0, v{vL16}
        v_add_u32 v{regs[0]}, v{regs[0]}, v{tmp}
        v_bfe_u32 v{tmp}, v{vL16}, 8, 1
        v_lshl_add_u32 v{regs[0]}, v{tmp}, 5, v{regs[0]}
        v_bfe_u32 v{tmp}, v{vL16}, 4, 2
        v_lshl_add_u32 v{regs[0]}, v{tmp}, 3, v{regs[0]}
        """)
        for r, n in list(zip(regs, slots))[::-1]:
            g.append([f"v_add_u32 v{r}, {(n % 4) * TILE}, v{regs[0]}"])
        return g

    @staticmethod
    def cost(g):
        c = 0
        for x in g:
            if callable(x): c += 1
            elif x.endswith(":"): pass
            elif x.startswith(TRANS) or x.startswith(("v_permlane", "buffer", "global", "s_cbranch")): c += 2
            else: c += 1
        return c
    @classmethod
    def spread(cls, n, *streams):
        gaps = [[] for _ in range(n)]
        load = [1 + (j % 2) for j in range(n)]
        for st in streams:
            groups, a, b = st[:3]
            b = min(b, n - 1)
            if len(st) > 3:
                for i, g in enumerate(groups):
                    j = a + (i * (b - a + 1)) // max(len(groups), 1)
                    gaps[j].append(g); load[j] += cls.cost(g)
                continue
            tot = sum(cls.cost(g) for g in groups)
            target = (tot + sum(load[a:b+1])) / (b - a + 1)
            i, placed, ex = 0, 0, 0
            for j in range(a, b + 1):
                ex += load[j]
                while i < len(groups) and (j == b or placed + cls.cost(groups[i]) / 2 <= target * (j - a + 1) - ex):
                    gaps[j].append(groups[i]); c = cls.cost(groups[i]); placed += c; load[j] += c; ex += 0; i += 1
        return gaps

    def softmax_groups(self, P, EP, EN, dst_of):
        g = []
        MX, MN, C = vT0, vT1, 58
        S1, S2 = 54, 56
        g.append([f"v_max3_f32 v{MX}, v{P}, v{P+1}, v{P+2}"])
        g.append([f"v_min3_f32 v{MN}, v{P}, v{P+1}, v{P+2}"])
        for k in range(3, 15, 2):
            g.append([f"v_max3_f32 v{MX}, v{MX}, v{P+k}, v{P+k+1}"])
            g.append([f"v_min3_f32 v{MN}, v{MN}, v{P+k}, v{P+k+1}"])
        g.append([f"v_max_f32 v{MX}, v{MX}, v{P+15}"])
        g.append([f"v_min_f32 v{MN}, v{MN}, v{P+15}"])
        g.append([pk("v_pk_mul_f32", MX, MX, ("b", C))])
        halves = []
        for E_, M_, S_, ng, sg in ((EP, MX, S1, [0, 0, 1], 0), (EN, MN, S2, [1, 0, 0], 1)):
            h = [[pk("v_pk_fma_f32", E_+k, P+k, ("b", C), ("b", M_), neg=ng)] for k in range(0, 16, 2)]
            h += [[f"v_exp_f32 v{E_+k}, v{E_+k}"] for k in range(16)]
            h.append([pk("v_pk_add_f32", S_, E_, E_+2)])
            h += [[pk("v_pk_add_f32", S_, S_, E_+k)] for k in range(4, 16, 2)]
            h.append([f"v_add_f32 v{S_}, v{S_}, v{S_+1}"])
            h.append([f"v_rcp_f32 v{S_}, v{S_}"])
            h += [[pk("v_pk_mul_f32", E_+k, E_+k, ("b", S_))] for k in range(0, 16, 2)]
            h += [[f"v_cvt_pk_bf16_f32 v{dst_of(sg,k)}, v{E_+2*k}, v{E_+2*k+1}"] for k in range(8)]
            halves.append(h)
        return g, halves[0], halves[1]

    def phi_groups(self, ACC, P, T):
        return ([[f"v_cvt_pk_bf16_f32 v{T+k}, v{ACC+2*k}, v{ACC+2*k+1}"] for k in range(8)] +
                [[f"v_mfma_f32_32x32x16_bf16 {vr(P,16)}, {ar(aPHI)}, {vr(T)}, 0"],
                 [f"v_mfma_f32_32x32x16_bf16 {vr(P,16)}, {ar(aPHI+4)}, {vr(T+4)}, {vr(P,16)}"]])

    def slab_phase(self, name, xphase, tiles, accs, ST, post, extra, tr=None):
        e = self.e
        nt = len(tiles)
        sl, stl = self.slab_loads(rot=bool(tr)), self.stats_loads(ST)
        LA = self.opt.get("la0", 7)
        fl2, ph2 = self.flag_group(None)
        assert ph2 == xphase + 1
        e("s_barrier")
        def pre():
            self.spin(vPX, sLF, xphase)
            self.stamp(f"{name} go")
            self.run(sl[:LA] + [fl2])
        km = self.opt.get("kmean", 31)
        ks = list(range(km)) + [32] + list(range(km, 32))
        seq = self.kseq(tiles, accs, ks, tr)
        gp, gc = self.opt.get("sgp", 10), self.opt.get("sgc", 24)
        self.slab_end = 2 * (32 - LA)
        streams = [(sl[LA:], 0, 2 * (32 - LA) - 1, 1), ([self.soft_issue(vPX, sLF)], gp, gp),
                   ([self.soft_check(vPX, sLF, ph2)], gc, gc), (stl, gc + 1, gc + 12, 1),
                   (self.stats_groups(ST) + post, km*nt - 13, km*nt - 3)] + extra
        streams += [([self.lstamp(f"{name} g{j}")], j, j, 1) for j in (0, 19, 40)]
        return seq, streams, pre

    def p1(self, L, xphase):
        e = self.e
        n0 = 10 * L
        AK, AV, AQ, AP = vACC, vACC+16, vACC+32, vACC+48
        ST = 54
        A1, A2, A3, A4, A5 = 40, 41, 42, 43, 44
        TR = self.vTR
        trd = 256 if L == 0 else 512
        addr = G(f"""
        v_and_b32 v{A1}, 0x1f0, v{vL16}
        v_lshlrev_b32 v{A1}, 1, v{A1}
        s_lshl_b32 s{sT0}, s{sW}, 10
        s_add_u32 s{sT0}, s{sT0}, {SCR}
        v_add_u32 v{A1}, s{sT0}, v{A1}
        v_lshrrev_b32 v{A3}, 9, v{vL16}
        v_lshl_add_u32 v{A2}, v{A3}, 4, v{A1}
        v_lshl_add_u32 v{A1}, v{A3}, 13, v{A1}
        v_lshrrev_b32 v{A3}, 1, v{vL16}
        s_lshl_b32 s{sT0}, s{sW}, 12
        s_add_u32 s{sT0}, s{sT0}, {SCR}
        s_lshr_b32 s{sT1}, s{sW}, 1
        s_lshl_b32 s{sT1}, s{sT1}, 12
        s_add_u32 s{sT1}, s{sT1}, {SCR + 16384}
        v_add_u32 v{A4}, s{sT1}, v{A3}
        v_add_u32 v{A3}, s{sT0}, v{A3}
        s_lshl_b32 s{sT0}, s{sW}, 9
        v_add_u32 v{A5}, s{sT0}, v{vL16}
        s_lshl_b32 s{sT0}, s{sW}, 5
        s_add_u32 s{sT0}, s{sT0}, 2048
        s_add_u32 s{sT1}, s{sT0}, 16
        v_writelane_b32 v{A5}, s{sT0}, 32
        v_writelane_b32 v{A5}, s{sT1}, 48
        s_add_u32 s{sT5}, s{sKVS}, {L*256*KVREC}
        """)
        post = [[f"v_mul_f32 v58, {f2u(LOG2E)}, v{vC1}"]]
        if L == 0:
            self.p1_first(AK, AV, ST, post, addr)
        else:
            self.run(self.tr_addr([TR, TR+1, TR+2], [n0, n0+1, n0+2], 1, vT0))
            seq, st, pre = self.slab_phase(f"p1.{L}", xphase, [n0, n0+1], [AK, AV], ST, post,
                                      [(addr, 2, 46), ([self.touch(sOS, 0, 16, 53)], 58, 58)], ([TR, TR+1], trd))
            self.gemm(seq, self.spread(66, *st), pre)
        self.stamp(f"p1.{L} kv gemm")
        T, VP = vWF, vWF + 8
        PK = AQ
        code = self.phi_groups(AK, AP, T)
        code += [[pk("v_pk_mul_f32", AV+k, AV+k, ("b", vC1))] for k in range(0, 16, 2)]
        code += [[f"v_cvt_pk_bf16_f32 v{VP+k}, v{AV+2*k}, v{AV+2*k+1}"] for k in range(8)]
        code += G(f"""
        ds_write_b128 v{A2}, {vr(VP)} offset:16384
        ds_write_b128 v{A2}, {vr(VP+4)} offset:{16384+4096}
        """)
        sm, pos, neg = self.softmax_groups(AP, AK, AV, lambda sg, k: PK + 8*sg + k)
        code += sm + pos
        code += G(f"""
        ds_write_b128 v{A1}, {vr(PK)}
        ds_write_b128 v{A1}, {vr(PK+4)} offset:16
        """)
        code += neg[:-4] + [[f"ds_write_b128 v{A1}, {vr(PK+8)} offset:4096"]] + neg[-4:] + [[f"ds_write_b128 v{A1}, {vr(PK+12)} offset:{4096+16}"]]
        if L == 0:
            bg = [self.touch(sOS, 0, 16, 46), self.touch(sXS, 0, 8, 47), self.touch(sXS, XTG, 8, 48)]
            self.run(code[:10] + bg + code[10:])
        else:
            bg = self.dma(n0 + 4)
            self.run(code[:10] + [["s_barrier"]] + bg[:4] + code[10:28] + bg[4:6] + code[28:] + bg[6:])
        e("s_waitcnt lgkmcnt(0)")
        e("s_barrier")
        FA, FB = AK, AV
        for s in range(4):
            for hf in range(2):
                e(f"ds_read_b64_tr_b16 {vr(FA+4*s+2*hf,2)}, v{A3} offset:{s*1024+hf*512}")
                e(f"ds_read_b64_tr_b16 {vr(FB+4*s+2*hf,2)}, v{A4} offset:{s*1024+hf*512}")
        KV, ZZ, GR = AP, AP + 4, AP + 8
        for s in range(4):
            e(f"v_mfma_f32_16x16x32_bf16 {vr(ZZ)}, {vr(FA+4*s)}, {ar(aONE)}, {'0' if s == 0 else vr(ZZ)}")
            e(f"v_mfma_f32_16x16x32_bf16 {vr(KV)}, {vr(FA+4*s)}, {vr(FB+4*s)}, {'0' if s == 0 else vr(KV)}")
        e(f"""
        v_cvt_pk_bf16_f32 v{GR+2}, v{ZZ}, v{ZZ+1}
        v_cvt_pk_bf16_f32 v{GR+3}, v{ZZ+2}, v{ZZ+3}
        v_cvt_pk_bf16_f32 v{GR}, v{KV}, v{KV+1}
        v_cvt_pk_bf16_f32 v{GR+1}, v{KV+2}, v{KV+3}
        v_permlane32_swap_b32 v{GR}, v{GR+2}
        v_permlane32_swap_b32 v{GR+1}, v{GR+3}
        v_min_u32 v{GR}, -2, v{GR}
        v_min_u32 v{GR+3}, -2, v{GR+3}
        s_mov_b32 exec_hi, 0x00010001
        buffer_store_dwordx4 {vr(GR)}, v{A5}, {sr(sWS)}, s{sT5} offen sc1
        s_mov_b64 exec, -1
        """)
        self.stamp(f"p1.{L} kv pub")
        KP = vSLAB + 64
        ZP = KP + 32
        B1, B2, B3 = A3, A4, A5
        addr = G(f"""
        v_lshrrev_b32 v{A1}, 9, v{vL16}
        v_mul_u32_u24 v{A1}, {KVREC}, v{A1}
        v_and_b32 v{A2}, 0x1f0, v{vL16}
        v_add_u32 v{A1}, v{A1}, v{A2}
        s_lshl_b32 s{sT0}, s{sW}, 9
        v_add_u32 v{A1}, s{sT0}, v{A1}
        s_add_u32 s{sT1}, s{sT0}, {KVB}
        v_add_u32 v{B2}, s{sT1}, v{A2}
        v_bfe_u32 v{A2}, v{vL16}, 4, 4
        v_mul_u32_u24 v{A2}, {KVREC}, v{A2}
        v_bfe_u32 v{vT0}, v{vL16}, 8, 1
        v_lshl_add_u32 v{A2}, v{vT0}, 4, v{A2}
        s_lshl_b32 s{sT0}, s{sW}, 5
        s_add_u32 s{sT0}, s{sT0}, 2048
        v_add_u32 v{A2}, s{sT0}, v{A2}
        v_and_b32 v{B1}, 0x130, v{vL16}
        v_bfe_u32 v{vT0}, v{vL16}, 6, 1
        v_lshl_add_u32 v{B1}, v{vT0}, 7, v{B1}
        v_bfe_u32 v{vT0}, v{vL16}, 7, 1
        v_lshl_add_u32 v{B1}, v{vT0}, 6, v{B1}
        v_lshrrev_b32 v{vT0}, 9, v{vL16}
        v_lshl_add_u32 v{B1}, v{vT0}, 3, v{B1}
        v_add_u32 v{B1}, s{sT1}, v{B1}
        v_and_b32 v{B3}, 0xf0, v{vL16}
        v_lshl_add_u32 v{B3}, v{vT0}, 10, v{B3}
        v_add_u32 v{B3}, {KVB}, v{B3}
        """)
        def kvg():
            return self.gather([(vr(ZP), A2, L*256*KVREC)] + [(vr(KP+4*i), A1, L*256*KVREC + 2*i*KVREC) for i in range(8)], sKVL, sLD)
        OA, OZ = vSLAB + 100, vWF
        kg = kvg()
        nin = self.opt.get("kvin", 9)
        seq = self.kseq([n0+2], [AQ], range(33), ([TR+2], trd))
        st, o = [], 0
        if L == 0:
            e(f"""
            v_add_u32 v{TR}, s{self.sW1K}, v{TR+2}
            v_lshrrev_b32 v{TR+1}, 1, v{vL16}
            s_lshl_b32 s{sT5}, s{sW}, 9
            s_add_u32 s{sT5}, s{sT5}, {OFF_F2}
            buffer_load_dwordx2 {vr(vT2,2)}, v{TR+1}, {sr(sWS)}, s{sT5} offen sc1
            """)
            e.wait(self.tok["w2_7"])
            e("s_barrier")
            seq = [(self.trr(TR, 4*c, trd), None, AK, c == 0) for c in range(8)] + seq
            o = 8
            k = self.opt.get("f2at", 14)
            st = [(self.colsum_out([AK], [2]), o + 3, o + 10),
                  ([[lambda tok: self.tagcheck(vT2, TR + 1, sT5), "s_waitcnt lgkmcnt(0)", "s_barrier"]], o + k, o + k, 1),
                  (self.dma(3), o + k + 1, o + 24, 1), (kg[:nin], o + 25, o + 32, 1), (addr, o + k + 1, o + 24),
                  (self.park(0, 0, 60, False) + self.park(1, 1, 60, False), 0, o + k - 1)]
        else:
            st = [(self.dma(n0 + 5), 0, self.opt.get("w3end", 16), 1), (kg[:nin], 25, 32, 1), (addr, 1, 24)]
        self.gemm(seq, self.spread(len(seq), *st))
        PQ = AQ
        def pq_dst(sg, k): return PQ + 8*sg + 4*((k >> 1) & 1) + (k & 1) + 2*(k >> 2)
        sm, pos, neg = self.softmax_groups(AP, AK, AV, pq_dst)
        zero = lambda b: [[pk("v_pk_mul_f32", b+k, ("b", vZ), ("b", vZ))] for k in range(0, 16, 2)]
        self.run(zero(OA) + self.phi_groups(AQ, AP, vWF) + kg[nin:] + zero(OZ) + sm + pos + neg)
        self.stamp(f"p1.{L} q done")
        def retry(Lback, groups):
            self.slow()
            for g in groups:
                for x in g: e.raw("    " + x)
            for x in f"""s_add_u32 s{sSPIN}, s{sSPIN}, 1
            s_cmp_gt_u32 s{sSPIN}, 0x80000
            s_cbranch_scc1 L_fail
            s_waitcnt vmcnt(0)
            s_branch {Lback}""".split("\n"): e.raw("    " + x.strip())
        Lz, Lzok, Lk, Lok = [e.label("KV") for _ in range(4)]
        e(f"s_mov_b32 s{sSPIN}, 0")
        e.place(Lz)
        e(f"v_max_u32 v{vT0}, v{ZP}, v{ZP+3}")
        e(f"v_cmp_eq_u32 vcc, -1, v{vT0}")
        e(f"s_cbranch_vccz {Lzok}")
        retry(Lz, kvg())
        e.place(Lzok)
        WO = vSLAB
        wo = self.gather([(vr(WO + 8*ks + 4*ft), vLX2 if ft else vLX, 2048*ks) for ks in range(8) for ft in range(2)],
                         sWO_, sLD3, flags="")
        w1, w2, w3 = self.opt.get("wo", (3, 6, 10))
        NUM, DEN = AP, AK
        e(f"""
        s_mov_b32 exec_hi, 0
        ds_write_b128 v{B2}, {vr(ZP)} offset:2048
        s_mov_b64 exec, -1
        """)
        self.run(wo[:w1])
        e(f"""
        s_waitcnt lgkmcnt(0)
        s_barrier
        s_mov_b32 exec_lo, 0x0000ffff
        s_mov_b32 exec_hi, 0xffff0000
        """)
        for s in range(4): e(f"ds_read_b128 {vr(OZ+4*s)}, v{B3} offset:{2048+s*256}")
        e("s_mov_b64 exec, -1")
        for s in range(4):
            e(f"v_mfma_f32_32x32x16_bf16 {vr(DEN,16)}, {vr(OZ+4*s)}, {vr(PQ+4*s)}, {'0' if s == 0 else vr(DEN,16)}")
            if w1 + s < w2: self.run([wo[w1 + s]])
        self.run(wo[min(w1 + 4, w2):w2])
        e.place(Lk)
        KV, GR = AV, AV + 4
        for i in range(8):
            e(f"v_mfma_f32_16x16x32_bf16 {vr(KV)}, {ar(aSEL)}, {vr(KP+4*i)}, {'0' if i == 0 else vr(KV)}")
            e(f"v_max_u32 v{vT0}, v{KP}, v{KP+3}" if i == 0 else f"v_max3_u32 v{vT0}, v{vT0}, v{KP+4*i}, v{KP+4*i+3}")
        e(f"v_cmp_eq_u32 vcc, -1, v{vT0}")
        e(f"s_cbranch_vccz {Lok}")
        retry(Lk, kvg())
        e.place(Lok)
        self.stamp(f"p1.{L} kv got")
        e(f"""
        v_cvt_pk_bf16_f32 v{GR}, v{KV}, v{KV+1}
        v_cvt_pk_bf16_f32 v{GR+1}, v{KV+2}, v{KV+3}
        ds_write_b64 v{B1}, {vr(GR,2)}
        """)
        for hd in range(2):
            D = DEN + 8*hd
            e(pk("v_pk_add_f32", D, D, D+2)); e(pk("v_pk_add_f32", D+4, D+4, D+6))
        for hd in range(2):
            D = DEN + 8*hd
            e(pk("v_pk_add_f32", D, D, D+4))
        e(f"""
        v_add_f32 v{DEN}, v{DEN}, v{DEN+1}
        v_add_f32 v{DEN+8}, v{DEN+8}, v{DEN+9}
        s_waitcnt lgkmcnt(0)
        s_barrier
        s_mov_b32 exec_lo, 0x0000ffff
        s_mov_b32 exec_hi, 0xffff0000
        """)
        for s in range(4): e(f"ds_read_b128 {vr(OA+4*s)}, v{B3} offset:{s*256}")
        e(f"""
        s_mov_b64 exec, -1
        v_permlane32_swap_b32 v{DEN}, v{DEN+8}
        v_add_f32 v{DEN}, v{DEN}, v{DEN+8}
        v_add_f32 v{DEN}, {f2u(1e-6)}, v{DEN}
        v_rcp_f32 v{DEN}, v{DEN}
        v_mov_b32 v{DEN+8}, v{DEN}
        v_permlane32_swap_b32 v{DEN}, v{DEN+8}
        """)
        for s in range(4):
            e(f"v_mfma_f32_32x32x16_bf16 {vr(NUM,16)}, {vr(OA+4*s)}, {vr(PQ+4*s)}, {'0' if s == 0 else vr(NUM,16)}")
            if w2 + s < w3: self.run([wo[w2 + s]])
        self.run(wo[min(w2 + 4, w3):w3])
        for hd in range(2):
            for k in range(0, 8, 2): e(pk("v_pk_mul_f32", NUM+8*hd+k, NUM+8*hd+k, ("b", DEN+8*hd)))
            for k in range(4): e(f"v_cvt_pk_bf16_f32 v{40+4*hd+k}, v{NUM+8*hd+2*k}, v{NUM+8*hd+2*k+1}")
            self.run([self.st2("buffer_store_dwordx4", vr(40+4*hd), vL16, sOS, hd*1024) + [self.mark("ost")]])
        fl, ph = self.flag_group("ost")
        self.run(wo[w3:] + self.splitk_init(range(2)) + [fl])
        self.stamp(f"p1.{L} o pub")
        return ph

    SACC = [vACC, vACC+16, vACC+32, vACC+48]
    def splitk_init(self, tts):
        g = []
        for tt in tts:
            a_ = self.SACC[2*tt]
            g += [[f"v_accvgpr_read_b32 v{a_+k}, a{aRES+8*tt+k}"] for k in range(8)]
            g += [[pk("v_pk_mul_f32", a_+k, ("b", vZ), ("b", vZ))] for k in range(8, 16, 2)]
        return g
    def splitk_addr(self, last):
        AW, AR = vMEAN, vMEAN + 3
        g = []
        for q in range(1, 4):
            g += [[f"s_xor_b32 s{sT0}, s{sW}, {q}", f"s_mul_i32 s{sT0}, s{sT0}, 6144",
                   f"s_add_u32 s{sT0}, s{sT0}, {SCR + (q-1)*2048}", f"v_add_u32 v{AW+q-1}, s{sT0}, v{vL16}"]]
        g += [[f"s_mul_i32 s{sT0}, s{sW}, 6144", f"s_add_u32 s{sT0}, s{sT0}, {SCR}", f"v_add_u32 v{AR}, s{sT0}, v{vL16}"]]
        if last: g += self.row_addr(vC1, vC2)
        else: g += [[lambda tok: self.stat_addr()]]
        return g

    def splitk(self, name, order, wreg, areg, ld, extra, last=False):
        e = self.e
        acc = self.SACC
        AW, AR = vMEAN, vMEAN + 3
        RB, PKD, SF = vWF, vWF + 24, vWF + 28
        def red_write(tt):
            return [[f"ds_write_b128 v{AW+q-1}, {vr(acc[2*tt] + 8*q + 4*hf)} offset:{hf*1024}"] for q in (2, 3, 1) for hf in range(2)]
        def red_read():
            return [[f"ds_read_b128 {vr(RB + 4*j)}, v{AR} offset:{j*1024}"] for j in range(6)]
        def red_fin(tt):
            O = acc[2*tt]
            g = [[pk("v_pk_add_f32", O+k, O+k, RB+8*q+k)] for q in range(3) for k in range(0, 8, 2)]
            g += [[f"v_cvt_pk_bf16_f32 v{PKD+k}, v{O+2*k}, v{O+2*k+1}"] for k in range(4)]
            if last:
                g.append([f"v_permlane32_swap_b32 v{PKD}, v{PKD+2}"])
                g.append([f"v_permlane32_swap_b32 v{PKD+1}, v{PKD+3}"])
                g.append([f"s_add_u32 s{sLD2}, s{sOUTO}, {tt*32768}",
                          f"buffer_store_dwordx4 {vr(PKD)}, v{vC1}, {sr(sOUT)}, s{sLD2} offen"])
                return g, []
            g += self.x_store(PKD, tt) + self.stat_part(O, tt)
            return g, self.unpack(PKD, O + 16) + self.keep(O + 16, tt)
        BAR = [["s_waitcnt lgkmcnt(0)", "s_barrier"]]
        lastA = max(j for j, (tt, ks) in enumerate(order) if tt == 0)
        if len(order) > 16:
            side1 = [[], []] + [x for w in red_write(0) for x in (w, [])] + [[], []] + BAR + red_read() + [[], []] + BAR
        else:
            side1 = [[]] + red_write(0) + [[], [], []] + BAR + red_read() + [[]] + BAR
        f0, k0 = red_fin(0)
        side2 = f0 + k0
        seen = set()
        s1 = s2 = 0
        for j, (tt, ks) in enumerate(order):
            self.run(ld[j] if j < len(ld) else [])
            for ft in (1, 0):
                c = "0" if (tt not in seen and ft == 1) else vr(acc[2*tt+ft], 16)
                e(f"v_mfma_f32_32x32x16_bf16 {vr(acc[2*tt+ft],16)}, {wreg(ks, ft)}, {areg(j)}, {c}")
                if j > lastA:
                    if s1 < len(side1):
                        k = 2 if side1[s1] and side1[s1][0].startswith("ds_read") else 1
                        self.run(side1[s1:s1+k]); s1 += k
                    else:
                        self.run(side2[s2:s2+4]); s2 += 4
            seen.add(tt)
            self.run(extra[j] if j < len(extra) else [])
        self.run(side1[s1:])
        self.stamp(f"{name} gemm")
        rest = side2[s2:]
        self.run(mix(rest, red_write(1), lead=min(8, len(rest))) if rest else red_write(1))
        f1, k1 = red_fin(1)
        if last:
            self.run(BAR + red_read() + f1)
            return None
        fl, ph = self.flag_group("xst")
        self.run(BAR + red_read() + f1 + k1[:8] + BAR + self.stat_read(0, SF) + self.stat_read(1, SF + 4) + k1[8:] + [fl] +
                 self.stat_fin(0, SF) + self.stat_fin(1, SF + 4))
        self.stamp(f"{name} pub")
        return ph

    def p2(self, L, phase):
        e = self.e
        self.spin(vPO, sLF, phase)
        self.stamp(f"p2.{L} go")
        order = [(tt, ks) for tt in range(2) for ks in range(8)]
        AB = vSLAB + 64
        g = self.gather([(vr(AB + 4*j), vL16, tt*32768 + ks*1024) for j, (tt, ks) in enumerate(order)], sOL, sLD)
        LA = self.opt.get("la2", 6)
        ld = [g[:LA+1] + self.splitk_addr(False)] + [[x] for x in g[LA+1:]]
        extra = [[] for _ in order]
        if L == 0:
            for i, x in enumerate(self.park(2, 2, 56, False)): extra[i // 2].append(x)
        for i, x in enumerate(self.dma(4 if L == 0 else 16)): extra[min(15, 16 - LA + (i * LA) // 9)].append(x)
        return self.splitk(f"p2.{L}", order, lambda ks, ft: vr(vSLAB + 8*ks + 4*ft), lambda j: vr(AB + 4*j), ld, extra)

    def p4_order(self, L):
        early = [7*j + self.tau(L, i) for j in range(4) for i in range(4)]
        late = [7*j + self.tau(L, i) for j in range(4) for i in (4, 5, 6)]
        early.sort(); late.sort()
        nb = self.opt.get("p4nb", 14)
        return ([(0, k) for k in early] + [(1, k) for k in early[:nb]] + [(0, k) for k in late] +
                [(1, k) for k in early[nb:]] + [(1, k) for k in late]), 16 + nb
    def p4_loads(self, L):
        order, _ = self.p4_order(L)
        return self.gather([(vr(vSLAB + 4*(j % 16)), vL16, tt*112*1024 + ks*1024) for j, (tt, ks) in enumerate(order)], sHL, sLD)
    def wd_loads(self):
        order, _ = self.p4_order(0)
        ksl = [ks for tt, ks in order if tt == 0]
        return self.gather([(self.wdreg(ks, ft), vLX2 if ft else vLX, 2048*ks) for ks in ksl for ft in range(2)],
                           sWD_, sLD3, flags="")
    def wdreg(self, ks, ft):
        order, _ = self.p4_order(0)
        p = 2 * [k for tt, k in order if tt == 0].index(ks) + ft
        return ar(4*p if p < 31 else 4*p + 4 if p < 55 else 124)
    @property
    def P4LA(self): return self.opt.get("la4", 10)
    def p4(self, L, ph):
        pha, phb, flb, wd = ph
        order, nlate = self.p4_order(L)
        g = self.p4_loads(L)
        LA = self.P4LA
        ld = [[x] for x in g[LA:]]
        extra = [[] for _ in order]
        init = self.splitk_init([1]) + self.splitk_addr(L == 1)
        for i, x in enumerate(init[:12]): extra[i].append(x)
        for i, x in enumerate(init[12:]): extra[22 + i].append(x)
        extra[self.opt.get("p4flag", 7 if L == 0 else 5)].append(flb)
        jl = nlate - LA
        extra[jl - self.opt.get("p4poll", 8)].append(self.soft_issue(vPO, sLF))
        ld[jl].insert(0, self.soft_check(vPO, sLF, phb))
        for j in range(7, 56, 7): extra[j].append(self.lstamp(f"p4.{L} s{j}"))
        for i, x in enumerate(wd): ld[i // 2].append(x)
        j0 = (len(wd) + 1) // 2
        if L == 0: assert 56 - len(wd) <= 31 and (47 - (56 - len(wd))) // 2 > 11
        if L == 0:
            nxt = [self.touch(sXS, 0, 8, 56), self.touch(sXS, XTG, 8, 57), self.touch(sXST, 0, 2, 58), self.touch(sXST, XTG, 2, 59),
                   self.code_touch("L_layer1", "L_end", 60)]
            for i, x in enumerate(nxt): extra[j0 + 2*i].append(x)
            for i, x in enumerate(self.park(12, 2, 54, True)): extra[i].append(x)
        return self.splitk(f"p4.{L}", order, self.wdreg, lambda j: vr(vSLAB + 4*(j % 16)),
                           ld, extra, last=(L == 1))

    def glu_groups(self, L, ACC, i, packed=False):
        PKD, T = 40, 44
        tau = self.tau(L, i)
        plain = L == 1 and i >= self.opt.get("hplain", 5)
        st = [f"s_add_u32 s{sLD2}, s{sHS}, {tau*1024}"] + (
            self.st2("buffer_store_dwordx4", vr(PKD), vL16, sLD2) if plain else
            [f"buffer_store_dwordx4 {vr(PKD)}, v{vL16}, {sr(sWS)}, s{sLD2} offen sc1"]) + [self.mark("hst")]
        if packed:
            g = [[pk("v_pk_mul_f32", T+k, ACC+k, ("b", vC1))] for k in range(0, 8, 2)]
            g += [[f"v_exp_f32 v{T+k}, v{T+k}"] for k in range(8)]
            g += [[pk("v_pk_fma_f32", T+k, T+k, ("b", vC2), ("b", vC2))] for k in range(0, 8, 2)]
            g += [[f"v_rcp_f32 v{T+k}, v{T+k}"] for k in range(8)]
            g += [[pk("v_pk_mul_f32", T+k, T+k, ACC+8+k)] for k in range(0, 8, 2)]
            g += [[f"v_cvt_pk_bf16_f32 v{PKD+k}, v{T+2*k}, v{T+2*k+1}"] for k in range(4)]
            return g + [st]
        ops = []
        for k in range(8):
            ops += [(k, 0, f"v_mul_f32 v{T+k}, v{ACC+k}, v{vC1}"), (k+1, 1, f"v_exp_f32 v{T+k}, v{T+k}"),
                    (k+2, 2, f"v_fma_f32 v{T+k}, v{T+k}, v{vC2}, v{vC2}"), (k+3, 3, f"v_rcp_f32 v{T+k}, v{T+k}"),
                    (k+4, 4, f"v_mul_f32 v{T+k}, v{T+k}, v{ACC+8+k}")]
            if k % 2: ops.append((k+5, 5, f"v_cvt_pk_bf16_f32 v{PKD+k//2}, v{T+k-1}, v{T+k}"))
        ops.sort(key=lambda o: (o[0], o[1]))
        return [[o[2]] for o in ops] + [st]

    def p3(self, L, xphase):
        e = self.e
        n0 = 10 * L + 3
        nf = 2 if L == 0 else self.opt.get("nf", 2)
        aset = [vACC + 16*i for i in (0, 1, 2, 3, 0, 2, 3)] if nf == 2 else [vACC + 16*i for i in (0, 1, 2, 3, 0, 2, 3)]
        ST = 52
        post = [[f"v_mul_f32 v{vC1}, {f2u(-LOG2E)}, v{vC1}"]]
        seq, streams, pre = self.slab_phase(f"p3.{L}", xphase, [n0 + i for i in range(nf)], aset[:nf], ST, post, [])
        n1 = 33 * nf
        BAR = lambda n: [self.waitfor(f"tile{n}") + ["s_barrier"]]
        wd = self.wd_loads() if L == 0 else []
        if L == 0:
            streams.append((self.dma(n0 + 2), self.slab_end, 59, 1))
            streams.append((self.dma(n0 + 3) + BAR(n0 + 2), n1 - self.PF - 2, n1 - self.PF - 2, 1))
        elif nf == 3:
            pass

        if nf == 2: epis = {2: [0, 1], 3: [2], 4: [3], 5: [4], 6: [5]}
        else: epis = {3: [0, 1], 4: [2, 3], 5: [4], 6: [5]}
        pha = None
        late = []
        b0 = n1
        for i in range(nf, 7):
            seq += self.kseq([n0 + i], [aset[i]], range(33))
            mem = []
            if nf == 2:
                if i <= 4: mem = [(self.dma(n0 + i + 2), b0 + 1, b0 + 26, 1)]
                else:
                    k = self.opt.get("nwd", 14) if i == 5 else self.opt.get("nwd6", 6)
                    mem = [(wd[:k], b0, b0 + (30 if i == 5 else 13), 1)]; wd = wd[k:]
            else:
                if i == nf: mem = [([["s_barrier"]], b0 + 1, b0 + 1, 1), (self.dma(n0 + 4), b0 + 2, b0 + 12, 1), (self.dma(n0 + 5), b0 + 14, b0 + 32, 1)]
                elif i == nf + 1: mem = [(self.dma(n0 + 6), b0 + 4, b0 + 26, 1)]
            if (nf == 2 and i == 2) or (L == 0 and i == 6): mem = [([["s_barrier"]], b0, b0, 1)] + mem
            streams += mem
            if L == 0 and i >= 5: streams.append((self.park(5 + i, i - 5, 52, True), b0 + 1, b0 + 24, 1))
            if L == 1 and i + 1 >= self.opt.get("hplain", 5) and i < 6:
                streams.append(([self.touch(sHS, self.tau(L, i + 1) * 1024, 8, 60 + i % 2)], b0 + 29, b0 + 29, 1))
            streams.append(([self.lstamp(f"p3.{L} t{i}")], b0 - 1, b0 - 1, 1))
            if i < 6: streams.append((BAR(n0 + i + 1), b0 + 33 - self.PF - 2, b0 + 33 - self.PF - 2, 1))
            if i == 5:
                fla, pha = self.flag_group("hst3")
                streams.append(([fla], b0 + self.opt.get("fla", 18), b0 + self.opt.get("fla", 18), 1))
            if i == 6:
                streams.append(([self.soft_issue(vPO, sLF)], b0 + 1, b0 + 1, 1))
                streams.append(([self.soft_check(vPO, sLF, pha)] + self.p4_loads(L)[:self.P4LA], b0 + 15, b0 + 25, 1))
                late.append((self.splitk_init([0]), b0 + 2, b0 + 32))
            epi = []
            for t in epis[i]:
                epi += self.glu_groups(L, aset[t], t)
                if t == 3: epi[-1].append(self.mark("hst3"))
            late.append((epi, b0 + 3, b0 + (23 if (i == 4 and len(epis[i]) == 1) else 31)))
            b0 += 33
        self.gemm(seq, self.spread(len(seq), *(streams + late)), pre)
        self.stamp(f"p3.{L} gemm")
        self.run(self.glu_groups(L, aset[6], 6, packed=True))
        flb, phb = self.flag_group("hst")
        self.stamp(f"p3.{L} pub")
        return pha, phb, flb, wd

    def build(self):
        e = self.e
        self.startup()
        ph = 0
        steps = 0
        for L in range(2):
            if L == 1: e.place("L_layer1")
            for f in (self.p1, self.p2, self.p3, self.p4):
                if self.stop is not None and steps >= self.stop: break
                ph = f(L, ph)
                steps += 1
        self.stamp("end")
        Ls = e.label("SK")
        e(f"""
        s_or_b32 s{sT0}, s2, s{sW}
        s_cmp_eq_u32 s{sT0}, 0
        s_cbranch_scc0 {Ls}
        s_add_u32 s{sT0}, s{sEP}, 1
        v_mov_b32 v{vT0}, s{sT0}
        s_mov_b64 exec, 1
        buffer_store_dword v{vT0}, v{vZ}, {sr(sWS)}, 0 offen
        s_mov_b64 exec, -1
        {Ls}:
        """)
        e.place("L_fail")
        if self.dbg == 2:
            e(f"""
            s_mov_b64 exec, -1
            s_memrealtime {sr(sTS,2)}
            s_waitcnt lgkmcnt(0)
            s_sub_u32 s{sTS}, s{sTS}, s{sRT0}
            v_writelane_b32 v{vSTAMP}, s{sTS}, 15
            s_mov_b32 s{sSA}, s{sPTR+18}
            s_mov_b32 s{sSA+1}, s{sPTR+19}
            s_mov_b32 s{sSA+2}, 256
            s_mov_b32 s{sSA+3}, 0x20000
            s_or_b32 s{sT0}, s2, s{sW}
            s_cmp_eq_u32 s{sT0}, 0
            s_cbranch_scc0 L_end
            buffer_store_dword v{vSTAMP}, v{vL4}, {sr(sSA)}, 0 offen
            """)
        elif self.dbg:
            e(f"""
            s_mov_b64 exec, -1
            s_memrealtime {sr(sTS,2)}
            s_waitcnt lgkmcnt(0)
            v_writelane_b32 v{vSTAMP}, s{sTS}, 63
            v_writelane_b32 v{vSTAMP}, s{sRT0}, 62
            v_writelane_b32 v{vSTAMP}, s13, 61
            s_lshl_b32 s{sT0}, s2, 2
            s_add_u32 s{sT0}, s{sT0}, s{sW}
            s_lshl_b32 s{sT0}, s{sT0}, 8
            s_add_u32 s{sT0}, s{sT0}, {OFF_DBG}
            buffer_store_dword v{vSTAMP}, v{vL4}, {sr(sWS)}, s{sT0} offen
            """)
        e.place("L_end")
        e("s_endpgm")
        for x in self.alt: e.raw(x)
        return e.text()

HEADER = open(os.path.join(os.path.dirname(os.path.abspath(__file__)), "header.txt")).read()

def generate(path, dbg=0, stop=None, opt=None):
    k = K(dbg=dbg, stop=stop, opt=opt)
    body = k.build()
    open(path, "w").write(wrap(body, 256, 256, LDS_SIZE, header=HEADER))
    if dbg: open(path + ".stamps", "w").write("\n".join(k.stamp_names))
    return k

if __name__ == "__main__":
    import argparse, json
    ap = argparse.ArgumentParser()
    ap.add_argument("out"); ap.add_argument("--dbg", type=int, default=0); ap.add_argument("--stop", type=int)
    ap.add_argument("--opt", default="{}")
    a = ap.parse_args()
    k = generate(a.out, a.dbg, a.stop, json.loads(a.opt))
    print("nops", k.e.nops, k.e.count)
```

```python
import sys, os, struct
sys.path.insert(0, os.path.dirname(os.path.abspath(__file__)))
from emit import *

OFF_EPOCH = 0
OFF_F2    = 0x1000
OFF_LF    = 0x2000
OFF_F1    = 0x8000
OFF_KV    = 0x10000
KVREC     = 2176
TILE      = 33792
OFF_WQKV  = 0x200000
OFF_WGU   = 0x400000
OFF_WD    = 0x800000
OFF_WO    = 0xA00000
OFF_X     = 0xB00000
XTG       = 34 * 1024
OFF_O     = 0xE00000
OFF_H     = 0x1000000
OFF_DBG   = 0x2000000
WS_SIZE   = 0x10000000
SCR       = 4 * TILE
KVB       = SCR + 24576
LDS_SIZE  = 163840

sWS, sSA, sSB = 8, 20, 24
sPURE = 12
sW, sR, sC, sTH, sFB = 28, 29, 30, 31, 32
sEP, sTAG, sTAG2, sXCC = 33, 34, 35, 36
sLF, sMYF = 37, 38
sXW, sXS, sXST = 39, 40, 41
sOS, sOL, sHS, sHL = 42, 43, 44, 45
sWG33, sWG, sWD_, sWO_ = 46, 47, 48, 49
sSQ = 16
sM0Q, sROT = 14, 15
sKVS, sKVL = 50, 51
sM0W = 52
sUNIT = 53
sEXQ = 54
sT0, sT1, sT2, sT3, sT4, sT5 = 56, 57, 58, 59, 60, 61
sSPIN = 62
sDMA, sLD, sLD2, sLD3 = 63, 64, 65, 66
sOUT = 68
sOUTO = 72
sTS, sT0S, sRT0 = 74, 76, 78
sPTR = 80
sPC = 4
sUDST, sUSTEP, sUCS = 3, 6, 7

vSTAMP = 0
vL16, vSLOT, vLX, vLX2, vPX, vPO, vZ, vL4 = 1, 2, 6, 7, 8, 9, 10, 11
vC1, vC2, vT0, vT1 = 12, 13, 14, 15
vMEAN, vWF, vTMP, vT2, vPOLL, vACC, vSLAB = 16, 20, 36, 62, 63, 64, 128
aWD, aRES, aPHI, aSEL, aONE = 0, 224, 240, 248, 252

LOG2E = 1.4426950408889634
def f2u(x): return hex(struct.unpack("<I", struct.pack("<f", x))[0])
def vr(b, n=4): return f"v[{b}:{b+n-1}]"
def ar(b, n=4): return f"a[{b}:{b+n-1}]"
def sr(b, n=4): return f"s[{b}:{b+n-1}]"
def G(text): return [[x.strip()] for x in text.strip().split("\n") if x.strip()]

def pk(op, dst, *srcs, neg=None):
    ops, lo, hi = [], [], []
    for s_ in srcs:
        if isinstance(s_, tuple):
            r = s_[1]; ops.append(vr(r & ~1, 2)); lo.append(r & 1); hi.append(r & 1)
        else:
            assert s_ % 2 == 0; ops.append(vr(s_, 2)); lo.append(0); hi.append(1)
    assert dst % 2 == 0
    t = f"{op} {vr(dst,2)}, " + ", ".join(ops) + f" op_sel:[{','.join(map(str,lo))}] op_sel_hi:[{','.join(map(str,hi))}]"
    if neg: t += f" neg_lo:[{','.join(map(str,neg))}] neg_hi:[{','.join(map(str,neg))}]"
    return t

def mix(a, b, lead=0, span=None):
    span = len(a) - lead if span is None else min(span, len(a) - lead)
    out = list(a[:lead]); j = 0
    for i in range(span):
        while j < len(b) and j * span <= i * len(b):
            out.append(b[j]); j += 1
        out.append(a[lead + i])
    out += b[j:]
    out += a[lead + span:]
    return out

class K:
    def __init__(self, dbg=0, stop=None, opt=None):
        self.e = E()
        self.dbg = dbg; self.stop = stop
        self.nstamp = 0; self.stamp_names = []
        self.phase = 0
        self.tok = {}
        self.opt = opt or {}
        self.alt = []
        self.light = []
        self.nslow = 0
        self.early = True

    def stamp(self, name):
        if not self.dbg: return
        if self.dbg == 4:
            if name == self.opt.get("leak"):
                self.e(f"s_memrealtime {sr(sTS,2)}")
                self.e("s_waitcnt lgkmcnt(0)")
                self.e(f"s_sub_u32 s13, s{sTS}, s{sRT0}")
            return
        if self.dbg == 2 and not (name.endswith("pub") or name in ("issued", "end", "p1.0 kv gemm")): return
        e = self.e
        e(f"s_memtime {sr(sTS,2)}" if self.dbg != 3 else f"s_memrealtime {sr(sTS,2)}")
        e("s_waitcnt lgkmcnt(0)")
        for i, nm in enumerate(self.light):
            e(f"s_sub_u32 s{80+2*i}, s{80+2*i}, s{sT0S if self.dbg != 3 else sRT0}")
            e(f"v_writelane_b32 v{vSTAMP}, s{80+2*i}, {self.nstamp}")
            self.stamp_names.append(nm); self.nstamp += 1
        self.light = []
        e(f"s_sub_u32 s{sTS}, s{sTS}, s{sT0S if self.dbg != 3 else sRT0}")
        e(f"v_writelane_b32 v{vSTAMP}, s{sTS}, {self.nstamp}")
        self.stamp_names.append(name); self.nstamp += 1

    def lstamp(self, name):
        def f(tok):
            if self.dbg not in (1, 3) or not any(name.startswith(p) for p in self.opt.get("light", [])): return
            i = len(self.light); assert i < 8
            self.e.raw(f"    {'s_memtime' if self.dbg == 1 else 's_memrealtime'} s[{80+2*i}:{81+2*i}]")
            self.light.append(name)
        return [f]

    def run(self, groups):
        tok = None
        for g in groups:
            for x in g:
                if callable(x): x(tok)
                else:
                    t = self.e(x)
                    if t and t[0] == "vm": tok = t
        return tok
    def mark(self, name):
        def f(tok): self.tok[name] = tok
        return f
    def waitfor(self, name):
        return [lambda tok: self.e.wait(self.tok[name])]

    def spin(self, vaddr, sbase, phase):
        e = self.e
        L = e.label("POLL")
        e(f"s_mov_b32 s{sSPIN}, 0")
        e.place(L)
        e(f"buffer_load_dword v{vPOLL}, v{vaddr}, {sr(sWS)}, s{sbase} offen sc1")
        e(f"s_add_u32 s{sSPIN}, s{sSPIN}, 1")
        e(f"s_cmp_gt_u32 s{sSPIN}, 0x200000")
        e("s_cbranch_scc1 L_fail")
        e("s_waitcnt vmcnt(0)")
        e(f"v_cmp_gt_u32 vcc, {phase}, v{vPOLL}")
        e(f"s_cbranch_vccnz {L}")

    def slow(self):
        if self.dbg in (1, 3):
            self.e.raw(f"    s_or_b32 s13, s13, {1 << self.nslow}")
            self.nslow += 1
    def soft_issue(self, vaddr, sbase):
        return [f"buffer_load_dword v{vPOLL}, v{vaddr}, {sr(sWS)}, s{sbase} offen sc1"]
    def soft_check(self, vaddr, sbase, phase):
        def f(tok):
            e = self.e
            Lok, L = e.label("OK"), e.label("SP")
            e(f"v_cmp_gt_u32 vcc, {phase}, v{vPOLL}")
            e(f"s_cbranch_vccz {Lok}")
            self.slow()
            for x in f"""s_mov_b32 s{sSPIN}, 0
            {L}:
            buffer_load_dword v{vPOLL}, v{vaddr}, {sr(sWS)}, s{sbase} offen sc1
            s_add_u32 s{sSPIN}, s{sSPIN}, 1
            s_cmp_gt_u32 s{sSPIN}, 0x200000
            s_cbranch_scc1 L_fail
            s_waitcnt vmcnt(0)
            v_cmp_gt_u32 vcc, {phase}, v{vPOLL}
            s_cbranch_vccnz {L}
            {Lok}:""".split("\n"): e.raw("    " + x.strip())
        return [f]

    def st2(self, op, data, vaddr, soff, imm=0):
        o = f" offset:{imm}" if imm else ""
        t = f"{op} {data}, v{vaddr}, {sr(sWS)}, s{soff} offen{o}"
        if self.early: return [t + " sc1"]
        La, Lr = self.e.label("WT"), self.e.label("RT")
        self.alt += [f"{La}:", "    s_nop 4", f"    {t} sc1", f"    s_branch {Lr}"]
        return [lambda tok: self.e.settle(t), f"s_cmp_eq_u32 s{sPURE}, 0", f"s_cbranch_scc1 {La}", t, f"{Lr}:"]

    def flag_group(self, tokname):
        self.phase += 1
        return ([f"v_mov_b32 v{vT2}, {self.phase}"] + (self.waitfor(tokname) if tokname else []) + ["s_mov_b64 exec, 1"] +
                self.st2("buffer_store_dword", f"v{vT2}", vZ, sMYF) + ["s_mov_b64 exec, -1"]), self.phase

    def tau(self, L, i): return i if L == 0 else 6 - i
    def dma(self, n):
        assert n % 10 >= 3 and n != 13
        toff = self.tau(n // 10, n % 10 - 3) * TILE
        slot = (n % 4) * TILE
        g = []
        for i in range(8):
            x = []
            if i % 4 == 0:
                x.append(f"s_add_u32 m0, s{sM0W}, {slot + i*1024}")
                x.append(f"s_add_u32 s{sDMA}, s{sWG}, {toff + i*1024}")
            x.append(f"buffer_load_dwordx4 v{vL16}, {sr(sWS)}, s{sDMA} offen offset:{(i%4)*1024} lds")
            g.append(x)
        g.append([f"s_add_u32 m0, s{sM0Q}, {slot}", f"s_add_u32 s{sDMA}, s{sWG33}, {toff}",
                  f"buffer_load_dword v{vL4}, {sr(sWS)}, s{sDMA} offen lds", self.mark(f"tile{n}")])
        return g

    def park(self, n, i, T, store):
        A_, C_ = 128 + 32*i, 124 + i
        g = [[f"v_add_u32 v{T}, s{sM0W}, v{vSLOT + n%4}"],
             [f"s_add_u32 s{sT4}, s{sM0Q}, {(n%4)*TILE}", f"v_add_u32 v{T+1}, s{sT4}, v{vL4}"]]
        for k in range(8):
            g.append([f"ds_write_b128 v{T}, {ar(A_+4*k)} offset:{k*1024}" if store else f"ds_read_b128 {ar(A_+4*k)}, v{T} offset:{k*1024}"])
        g.append([f"ds_write_b32 v{T+1}, a{C_}" if store else f"ds_read_b32 a{C_}, v{T+1}"])
        return g

    def gather(self, items, sbase, sreg, flags="sc1", op="buffer_load_dwordx4"):
        g, cur = [], None
        for dst, vaddr, off in items:
            x = []
            if cur is None or not (0 <= off - cur < 4096):
                cur = off; x.append(f"s_add_u32 s{sreg}, s{sbase}, {off}")
            o = f" offset:{off-cur}" if off != cur else ""
            x.append(f"{op} {dst}, v{vaddr}, {sr(sWS)}, s{sreg} offen{o} {flags}".rstrip())
            g.append(x)
        return g

    def touch(self, sbase, off, nlines, vT2=vT2):
        m = (1 << nlines) - 1
        return [f"v_lshlrev_b32 v{vT2}, 3, v{vL16}", f"s_add_u32 s{sLD3}, s{sbase}, {off}",
                f"s_mov_b64 exec, {m}" if nlines < 32 else f"s_mov_b32 exec_hi, {m >> 32}",
                f"buffer_load_dword v{vT2}, v{vT2}, {sr(sWS)}, s{sLD3} offen sc1", "s_mov_b64 exec, -1"]

    def code_touch(self, lo, hi, vT2=vT2):
        return [f"s_lshr_b32 s{sLD3}, s2, 3", f"s_lshl_b32 s{sLD3}, s{sLD3}, 2", f"s_add_u32 s{sLD3}, s{sLD3}, s{sW}",
                f"s_lshl_b32 s{sLD3}, s{sLD3}, 9", f"s_add_u32 s{sLD3}, s{sLD3}, {lo}-L_pc",
                f"v_lshl_add_u32 v{vT2}, v{vL16}, 3, s{sLD3}", f"v_min_u32 v{vT2}, {hi}-L_pc-4, v{vT2}",
                "s_mov_b64 exec, 15", f"global_load_dword v{vT2}, v{vT2}, {sr(sPC,2)}", "s_mov_b64 exec, -1"]

    def lane(self, dst): self.e(f"v_lshrrev_b32 v{dst}, 4, v{vL16}")
    def row_addr(self, dst, tmp):
        return G(f"""v_and_b32 v{tmp}, 0x1f0, v{vL16}
        v_lshlrev_b32 v{tmp}, 6, v{tmp}
        v_lshrrev_b32 v{dst}, 9, v{vL16}
        v_lshl_add_u32 v{dst}, v{dst}, 4, v{tmp}""")

    def setup_rest(self):
        e = self.e
        self.lane(vT1)
        for i in range(4): e(f"v_add_u32 v{vSLOT+i}, {i*TILE}, v{vL16}")
        e(f"""
        v_mov_b32 v{vZ}, 0
        s_lshl_b32 s{sOUTO}, s{sC}, 1
        s_add_u32 s{sOUTO}, s{sOUTO}, s{sTH}
        s_lshl_b32 s{sOUTO}, s{sOUTO}, 16
        s_lshl_b32 s{sT0}, s{sFB}, 7
        s_lshl_b32 s{sT1}, s{sW}, 5
        s_add_u32 s{sOUTO}, s{sOUTO}, s{sT0}
        s_add_u32 s{sOUTO}, s{sOUTO}, s{sT1}
        s_lshl_b32 s{sT0}, s{sC}, 17
        s_lshl_b32 s{sT1}, s{sW}, 15
        s_lshl_b32 s{sT2}, s{sR}, 11
        s_add_u32 s{sOS}, s{sT0}, s{sT1}
        s_add_u32 s{sOS}, s{sOS}, s{sT2}
        s_add_u32 s{sOS}, s{sOS}, {OFF_O}
        s_lshl_b32 s{sM0W}, s{sW}, 13
        s_lshl_b32 s{sT0}, s{sW}, 4
        s_mov_b64 s[{sEXQ}:{sEXQ+1}], 0xffff
        s_lshl_b64 s[{sEXQ}:{sEXQ+1}], s[{sEXQ}:{sEXQ+1}], s{sT0}
        s_and_b32 s{sT0}, s{sW}, 1
        s_lshl_b32 s{sT0}, s{sT0}, 8
        v_xor_b32 v{vLX}, s{sT0}, v{vL16}
        s_lshr_b32 s{sT0}, s{sW}, 1
        s_lshl_b32 s{sT0}, s{sT0}, 10
        v_add_u32 v{vLX}, s{sT0}, v{vLX}
        v_xor_b32 v{vLX2}, 0x400, v{vLX}
        s_lshl_b32 s{sLF}, s{sC}, 9
        s_add_u32 s{sLF}, s{sLF}, {OFF_LF}
        s_lshl_b32 s{sT0}, s{sW}, 7
        s_lshl_b32 s{sT1}, s{sR}, 2
        s_add_u32 s{sMYF}, s{sLF}, s{sT0}
        s_add_u32 s{sMYF}, s{sMYF}, s{sT1}
        v_bfe_u32 v{vT0}, v{vT1}, 3, 2
        v_lshlrev_b32 v{vT0}, 7, v{vT0}
        v_and_b32 v{vC1}, 7, v{vT1}
        v_lshl_add_u32 v{vPX}, v{vC1}, 2, v{vT0}
        s_lshr_b32 s{sT0}, s{sW}, 1
        s_lshl_b32 s{sT0}, s{sT0}, 5
        v_add_u32 v{vPX}, s{sT0}, v{vPX}
        v_bfe_u32 v{vT0}, v{vT1}, 2, 1
        v_lshlrev_b32 v{vT0}, 7, v{vT0}
        v_and_b32 v{vC1}, 3, v{vT1}
        v_lshl_add_u32 v{vPO}, v{vC1}, 2, v{vT0}
        s_lshl_b32 s{sT0}, s{sTH}, 8
        s_lshl_b32 s{sT1}, s{sW}, 4
        s_add_u32 s{sT0}, s{sT0}, s{sT1}
        v_add_u32 v{vPO}, s{sT0}, v{vPO}
        s_mul_i32 s{sT0}, s{sC}, {4*XTG}
        s_add_u32 s{sT0}, s{sT0}, {OFF_X}
        s_mul_i32 s{sT1}, s{sW}, {XTG}
        s_add_u32 s{sXW}, s{sT0}, s{sT1}
        s_mul_i32 s{sT1}, s{sTH}, {2*XTG}
        s_add_u32 s{sT0}, s{sT0}, s{sT1}
        s_lshl_b32 s{sT1}, s{sFB}, 2
        s_add_u32 s{sT1}, s{sT1}, s{sW}
        s_lshl_b32 s{sT1}, s{sT1}, 10
        s_add_u32 s{sXS}, s{sT0}, s{sT1}
        s_lshl_b32 s{sT1}, s{sFB}, 8
        s_add_u32 s{sXST}, s{sT0}, s{sT1}
        s_add_u32 s{sXST}, s{sXST}, {32*1024}
        s_lshl_b32 s{sT0}, s{sC}, 17
        s_add_u32 s{sT0}, s{sT0}, {OFF_O}
        s_lshl_b32 s{sT1}, s{sTH}, 16
        s_add_u32 s{sOL}, s{sT0}, s{sT1}
        s_add_u32 s{sOL}, s{sOL}, s{sM0W}
        s_mul_i32 s{sT0}, s{sC}, {448*1024}
        s_add_u32 s{sT0}, s{sT0}, {OFF_H}
        s_mul_i32 s{sT1}, s{sW}, {112*1024}
        s_mul_i32 s{sT2}, s{sR}, {7*1024}
        s_add_u32 s{sHS}, s{sT0}, s{sT1}
        s_add_u32 s{sHS}, s{sHS}, s{sT2}
        s_mul_i32 s{sT1}, s{sTH}, {224*1024}
        s_mul_i32 s{sT2}, s{sW}, {28*1024}
        s_add_u32 s{sHL}, s{sT0}, s{sT1}
        s_add_u32 s{sHL}, s{sHL}, s{sT2}
        s_mul_i32 s{sWG}, s{sR}, {0 if self.opt.get("fakew") else 7*TILE}
        s_add_u32 s{sWG}, s{sWG}, {OFF_WGU}
        s_lshl_b32 s{sM0Q}, s{sW}, 8
        s_add_u32 s{sM0Q}, s{sM0Q}, 32768
        s_add_u32 s{sWG33}, s{sWG}, s{sM0Q}
        s_add_u32 s{sWG}, s{sWG}, s{sM0W}
        s_mul_i32 s{sWD_}, s{sFB}, {0 if self.opt.get("fakew") else 224*1024}
        s_mul_i32 s{sT0}, s{sW}, {56*1024}
        s_add_u32 s{sWD_}, s{sWD_}, s{sT0}
        s_add_u32 s{sWD_}, s{sWD_}, {OFF_WD}
        s_mul_i32 s{sWO_}, s{sFB}, {0 if self.opt.get("fakew") else 65536}
        s_lshl_b32 s{sT0}, s{sW}, 14
        s_add_u32 s{sWO_}, s{sWO_}, s{sT0}
        s_add_u32 s{sWO_}, s{sWO_}, {OFF_WO}
        s_mul_i32 s{sKVL}, s{sR}, {16*KVREC}
        s_add_u32 s{sKVL}, s{sKVL}, {OFF_KV}
        s_mul_i32 s{sT0}, s{sC}, {KVREC}
        s_add_u32 s{sKVS}, s{sKVL}, s{sT0}
        """)
        e(f"""
        v_and_b32 v{vT0}, 15, v{vT1}
        v_bfe_u32 v{vC1}, v{vT1}, 4, 1
        v_lshlrev_b32 v{vC1}, 2, v{vC1}
        v_sub_u32 v{vT0}, v{vT0}, v{vC1}
        v_mov_b32 v{vC1}, 0x3f803f80
        v_mov_b32 v{vTMP+1}, 0x3f80
        """)
        for k in range(4):
            q0 = 2 * k if k < 2 else 2 * k + 4
            e(f"""
            v_cmp_eq_u32 vcc, {q0}, v{vT0}
            v_accvgpr_write_b32 a{aONE+k}, v{vC1}
            v_cndmask_b32 v{vTMP}, 0, v{vTMP+1}, vcc
            v_cmp_eq_u32 vcc, {q0+1}, v{vT0}
            v_cndmask_b32 v{vTMP}, v{vTMP}, 1.0, vcc
            v_accvgpr_write_b32 a{aSEL+k}, v{vTMP}
            """)

    STG = 2 * TILE
    XST = 3 * TILE
    vXA, vWA, vXR, vTR, vF1, vUA, vUT, vUC, vTG = 40, 45, 46, 50, 53, 56, 57, 58, 60
    sXB, sWB, sW4K, sW1K = 0, 1, 53, 88

    def unit_decode(self):
        e = self.e
        PWO, PG, PU, PD = sPTR+6, sPTR+10, sPTR+12, sPTR+14
        sSTR, sSO, sGU = sT0, sT1, sT5
        Ld, Lo, Lgo = [e.label("U") for _ in range(3)]
        def setsrc(pa, pb, size):
            e(f"""
            s_mov_b32 s{sSA}, s{pa}
            s_mov_b32 s{sSA+1}, s{pa+1}
            s_mov_b32 s{sSA+2}, {size}
            s_mov_b32 s{sSB}, s{pb}
            s_mov_b32 s{sSB+1}, s{pb+1}
            """)
        e(f"""
        s_cmp_ge_u32 s2, 168
        s_cbranch_scc1 {Lo}
        s_cmp_ge_u32 s2, 112
        s_cbranch_scc1 {Ld}
        """)
        setsrc(PG, PU, 512*3584)
        e(f"""
        s_mov_b32 s{sSTR}, 3584
        s_and_b32 s{sUCS}, s2, 3
        s_lshr_b32 s{sLD}, s2, 2
        s_lshl_b32 s{sSO}, s{sLD}, 7
        s_lshl_b32 s{sLD}, s{sLD}, 2
        s_add_u32 s{sLD}, s{sLD}, s{sW}
        s_mul_i32 s{sUDST}, s{sLD}, {TILE}
        s_add_u32 s{sUDST}, s{sUDST}, {OFF_WGU}
        s_mov_b32 s{sUSTEP}, 1024
        s_mov_b32 s{sGU}, 1
        s_branch {Lgo}
        """)
        for lab, ptr, size, u0, off, fbs in ((Ld, PD, 1792*1024, 112, OFF_WD, 224*1024), (Lo, PWO, 512*1024, 168, OFF_WO, 65536)):
            e.place(lab)
            setsrc(ptr, ptr, size)
            e(f"""
            s_mov_b32 s{sSTR}, 1024
            s_sub_u32 s{sLD}, s2, {u0}
            s_lshr_b32 s{sUCS}, s{sLD}, 2
            s_and_b32 s{sLD}, s{sLD}, 3
            s_lshl_b32 s{sSO}, s{sLD}, 8
            s_lshl_b32 s{sLD}, s{sLD}, 2
            s_add_u32 s{sLD}, s{sLD}, s{sW}
            s_lshr_b32 s{sLD2}, s{sLD}, 1
            s_mul_i32 s{sUDST}, s{sLD2}, {fbs}
            s_and_b32 s{sLD}, s{sLD}, 1
            s_lshl_b32 s{sLD}, s{sLD}, 10
            s_add_u32 s{sUDST}, s{sUDST}, s{sLD}
            s_add_u32 s{sUDST}, s{sUDST}, {off}
            s_mov_b32 s{sUSTEP}, 2048
            s_mov_b32 s{sGU}, 0
            """)
            if lab == Ld: e(f"s_branch {Lgo}")
        e.place(Lgo)
        e(f"""
        s_cmp_ge_u32 s2, {self.opt.get("maxunit", 184)}
        s_cselect_b32 s{sSA+2}, 0, s{sSA+2}
        s_mov_b32 s{sSB+2}, s{sSA+2}
        v_lshrrev_b32 v{self.vUA}, 7, v{vL16}
        v_mul_lo_u32 v{self.vUA}, v{self.vUA}, s{sSTR}
        v_and_b32 v{vT0}, 0x70, v{vL16}
        v_add_u32 v{self.vUA}, v{self.vUA}, v{vT0}
        s_lshl_b32 s73, s{sUCS}, 2
        s_add_u32 s73, s73, s{sW}
        s_lshl_b32 s73, s73, 5
        s_mul_i32 s73, s73, s{sSTR}
        s_add_u32 s73, s73, s{sSO}
        s_cmp_eq_u32 s{sGU}, 1
        s_cselect_b32 s67, 0, 128
        s_add_u32 s67, s67, s73
        s_lshl_b32 s{sT3}, s{sSTR}, 3
        """)
    def unit_dma(self):
        e = self.e
        for i in range(4):
            e(f"s_add_u32 m0, s{self.sW4K}, {self.STG + i*1024}")
            e(f"buffer_load_dwordx4 v{self.vUA}, {sr(sSA)}, s73 offen lds")
            e(f"s_add_u32 m0, s{self.sW4K}, {self.STG + 16384 + i*1024}")
            e(f"buffer_load_dwordx4 v{self.vUA}, {sr(sSB)}, s67 offen lds")
            if i < 3:
                e(f"s_add_u32 s73, s73, s{sT3}")
                e(f"s_add_u32 s67, s67, s{sT3}")
    def unit_addr(self):
        e = self.e
        sGU = sT5
        self.lane(vT1)
        e(f"""
        v_bfe_u32 v{self.vUT}, v{vT1}, 2, 2
        v_lshrrev_b32 v{vT0}, 5, v{vT1}
        v_lshl_add_u32 v{self.vUT}, v{vT0}, 2, v{self.vUT}
        v_lshlrev_b32 v{self.vUT}, 7, v{self.vUT}
        v_and_b32 v{vT0}, 3, v{vT1}
        v_lshl_add_u32 v{self.vUT}, v{vT0}, 3, v{self.vUT}
        v_bfe_u32 v{vT0}, v{vT1}, 4, 1
        s_cmp_eq_u32 s{sGU}, 1
        s_cselect_b32 s{sLD}, 16384, 32
        v_mul_lo_u32 v{vT0}, v{vT0}, s{sLD}
        v_add_u32 v{self.vUT}, v{self.vUT}, v{vT0}
        s_lshr_b32 s{sLD}, s{sW}, 1
        s_lshl_b32 s{sLD}, s{sLD}, 14
        s_and_b32 s{sLD2}, s{sW}, 1
        s_lshl_b32 s{sLD2}, s{sLD2}, 6
        s_add_u32 s{sLD}, s{sLD}, s{sLD2}
        s_lshl_b32 s{sLD2}, s{sW}, 5
        s_cmp_eq_u32 s{sGU}, 1
        s_cselect_b32 s{sLD}, s{sLD2}, s{sLD}
        s_add_u32 s{sLD}, s{sLD}, {self.STG}
        v_add_u32 v{self.vUT}, s{sLD}, v{self.vUT}
        s_mov_b32 s{sSA}, s{sPTR+20}
        s_mov_b32 s{sSA+1}, s{sPTR+21}
        s_mov_b32 s{sSB}, s{sPTR+20}
        s_mov_b32 s{sSB+1}, s{sPTR+21}
        s_cmp_eq_u32 s{sSA+2}, 0
        s_cselect_b32 s{sSA+2}, 0, {WS_SIZE}
        s_cmp_eq_u32 s{sGU}, 1
        s_cselect_b32 s{sSB+2}, s{sSA+2}, 0
        s_lshr_b32 s{sLD}, s{sUCS}, 1
        s_lshl_b32 s{sLD}, s{sLD}, 9
        s_and_b32 s{sLD2}, s{sUCS}, 1
        s_lshl_b32 s{sLD2}, s{sLD2}, 3
        s_add_u32 s{sLD}, s{sLD}, s{sLD2}
        s_add_u32 s{sLD}, s{sLD}, s{sUDST}
        s_add_u32 s67, s{sLD}, 32768
        s_lshl_b32 s{sLD}, s{sUCS}, 3
        s_mul_i32 s{sLD}, s{sLD}, s{sUSTEP}
        s_add_u32 s{sUDST}, s{sLD}, s{sUDST}
        """)
    def hilo(self, dst, src, tmp):
        return G(f"""v_cvt_pk_bf16_f32 v{dst}, v{src}, v{src}
        v_and_b32 v{tmp}, 0xffff0000, v{dst}
        v_sub_f32 v{tmp}, v{src}, v{tmp}
        v_cvt_pk_bf16_f32 v{dst+1}, v{tmp}, v{tmp}""")
    def unit_read(self):
        e = self.e
        CS = vSLAB + 112
        for s in range(8):
            e(f"ds_read_b64_tr_b16 {ar(4*s,2)}, v{self.vUT} offset:{s*2048}")
            e(f"ds_read_b64_tr_b16 {ar(4*s+2,2)}, v{self.vUT} offset:{s*2048 + 1024}")
        for s in range(8):
            e(f"v_mfma_f32_32x32x16_bf16 {vr(CS,16)}, {ar(aONE)}, {ar(4*s)}, {'0' if s == 0 else vr(CS,16)}")
    def unit_store(self):
        e = self.e
        for s in range(8):
            e(f"buffer_store_dwordx4 {ar(4*s)}, v{vL16}, {sr(sSA)}, s{sUDST} offen sc1")
            if s < 7: e(f"s_add_u32 s{sUDST}, s{sUDST}, s{sUSTEP}")
        self.run(self.hilo(self.vUC, vSLAB + 112, self.vUA))
        e(f"""
        s_mov_b32 exec_hi, 0
        buffer_store_dwordx2 {vr(self.vUC,2)}, v{vL16}, {sr(sSB)}, s67 offen sc1
        s_mov_b64 exec, -1
        """)

    def gflag(self, off, shift):
        e = self.e
        L = e.label("GF")
        for x in f"""s_cmp_eq_u32 s{sW}, 0
        s_cbranch_scc0 {L}
        s_lshl_b32 s{sLD3}, s2, {shift}
        s_add_u32 s{sLD3}, s{sLD3}, {off}
        s_mov_b64 exec, 1
        buffer_store_dwordx2 {vr(self.vTG,2)}, v{vZ}, {sr(sWS)}, s{sLD3} offen sc1
        s_mov_b64 exec, -1
        {L}:""".split("\n"): e.raw("    " + x.strip())

    def tagcheck(self, F, vaddr, soff):
        e = self.e
        Lp, Lok = e.label("TG"), e.label("TGOK")
        e(f"s_mov_b32 s{sSPIN}, 0")
        e.wait(e.pend.get(("v", F)))
        e.place(Lp)
        e(f"""
        v_and_b32 v{vT0}, 0xfffffff0, v{F+1}
        v_cmp_ne_u32 vcc, s{sTAG}, v{F}
        v_cmp_ne_u32 {sr(sT2,2)}, s{sTAG2}, v{vT0}
        s_or_b64 {sr(sT2,2)}, vcc, {sr(sT2,2)}
        s_cbranch_scc0 {Lok}
        """)
        self.slow()
        for x in f"""buffer_load_dwordx2 {vr(F,2)}, v{vaddr}, {sr(sWS)}, s{soff} offen sc1
        s_add_u32 s{sSPIN}, s{sSPIN}, 1
        s_cmp_gt_u32 s{sSPIN}, 0x80000
        s_cbranch_scc1 L_fail
        s_waitcnt vmcnt(0)
        s_branch {Lp}
        {Lok}:""".split("\n"): e.raw("    " + x.strip())

    def x_chunk(self, c):
        g = [[f"s_add_u32 s{sDMA}, s{sFB}, {c}", f"s_and_b32 s{sDMA}, s{sDMA}, 7", f"s_lshl_b32 s{sDMA}, s{sDMA}, 7",
              f"s_add_u32 s{sDMA}, s{sDMA}, s{self.sXB}", f"s_add_u32 m0, s{self.sW4K}, {self.XST + (c % 3)*16384}"]]
        for i in range(4):
            g.append([f"buffer_load_dwordx4 v{self.vXA+i}, {sr(sOUT)}, s{sDMA} offen offset:{i*1024} lds", self.mark(f"x{c}")])
        return g
    def w_chunk(self, c, tiles):
        g = []
        for n, t in enumerate(tiles):
            part = (1024, 2048, 0)[t]
            x = []
            if n == 0:
                x = [f"s_add_u32 s{sROT}, s{sFB}, {c}", f"s_and_b32 s{sROT}, s{sROT}, 7", f"s_mul_i32 s{sROT}, s{sROT}, {64*3072}",
                     f"s_add_u32 s{sROT}, s{sROT}, s{self.sWB}"]
            x += [f"s_add_u32 m0, s{self.sW1K}, {t*TILE + c*4096}", f"s_add_u32 s{sDMA}, s{sROT}, {part}",
                  f"buffer_load_dwordx4 v{self.vWA}, {sr(sSQ)}, s{sDMA} offen lds", self.mark(f"w{t}_{c}")]
            g.append(x)
        return g

    def startup(self):
        e = self.e
        PX, PQKV, PPHI = sPTR, sPTR+2, sPTR+4
        e(f"""
        s_cmp_ge_u32 s2, 256
        s_cbranch_scc1 L_end
        """)
        if self.dbg:
            e(f"s_memtime {sr(sT0S,2)}")
            e(f"s_memrealtime {sr(sRT0,2)}")
        XA = self.vXA
        e(f"""
        s_load_dwordx16 s[{sPTR}:{sPTR+15}], s[0:1], 0
        s_load_dwordx4 s[{sPTR+16}:{sPTR+19}], s[0:1], 64
        s_load_dwordx2 s[{sPTR+20}:{sPTR+21}], s[0:1], 80
        v_lshrrev_b32 v{vT0}, 6, v0
        v_and_b32 v{vT1}, 63, v0
        v_readfirstlane_b32 s{sW}, v{vT0}
        v_lshlrev_b32 v{vL16}, 4, v{vT1}
        v_lshlrev_b32 v{vL4}, 2, v{vT1}
        s_getpc_b64 {sr(sPC,2)}
        L_pc:
        """)
        self.run([self.code_touch("L_pc", "L_end")])
        e(f"""
        s_and_b32 s{sC}, s2, 7
        s_lshl_b32 s{sC}, s{sC}, 1
        s_lshr_b32 s{sT0}, s2, 7
        s_add_u32 s{sC}, s{sC}, s{sT0}
        s_lshr_b32 s{sR}, s2, 3
        s_and_b32 s{sR}, s{sR}, 15
        s_lshr_b32 s{sTH}, s{sR}, 3
        s_add_u32 s{sFB}, s{sR}, s{sC}
        s_and_b32 s{sFB}, s{sFB}, 7
        s_lshl_b32 s{self.sW4K}, s{sW}, 12
        v_lshrrev_b32 v{vT0}, 3, v{vT1}
        v_lshrrev_b32 v{vC1}, 4, v{vT1}
        v_xor_b32 v{vC1}, v{vC1}, v{vT1}
        v_and_b32 v{vC1}, 7, v{vC1}
        v_lshlrev_b32 v{vC1}, 4, v{vC1}
        v_lshl_add_u32 v{XA}, v{vT0}, 10, v{vC1}
        v_xor_b32 v{XA+1}, 64, v{XA}
        v_add_u32 v{XA+2}, {2*7168}, v{XA}
        v_add_u32 v{XA+3}, {3*7168}, v{XA+1}
        v_add_u32 v{XA+1}, 7168, v{XA+1}
        v_lshrrev_b32 v{vT0}, 2, v{vT1}
        v_mul_u32_u24 v{vT0}, 3072, v{vT0}
        v_and_b32 v{vC1}, 0x30, v{vL16}
        v_add_u32 v{self.vWA}, v{vT0}, v{vC1}
        s_mov_b32 s{sOUT+2}, 0x200000
        s_mov_b32 s{sOUT+3}, 0x20000
        s_mov_b32 s{sSQ+2}, {512*3072}
        s_mov_b32 s{sSQ+3}, 0x20000
        s_mov_b32 s{sSA+2}, 16384
        s_mov_b32 s{sSA+3}, 0x20000
        s_mov_b32 s{sSB+3}, 0x20000
        s_mov_b32 s{sWS+2}, {WS_SIZE}
        s_mov_b32 s{sWS+3}, 0x20000
        s_lshl_b32 s{sT0}, s{sC}, 2
        s_add_u32 s{sT0}, s{sT0}, s{sW}
        s_mul_i32 s{sT1}, s{sW}, {16*3072}
        s_lshl_b32 s{sT2}, s{sR}, 6
        s_waitcnt lgkmcnt(0)
        s_lshl_b32 s{self.sXB}, s{sT0}, 15
        s_add_u32 s{self.sWB}, s{sT1}, s{sT2}
        s_lshl_b32 s{self.sW1K}, s{sW}, 10
        s_mov_b32 s{sOUT}, s{PX}
        s_mov_b32 s{sOUT+1}, s{PX+1}
        s_mov_b32 s{sSQ}, s{PQKV}
        s_mov_b32 s{sSQ+1}, s{PQKV+1}
        """)
        if self.dbg: e(f"v_mov_b32 v{vSTAMP}, 0"); e("s_mov_b32 s13, 0")
        self.run(self.x_chunk(0) + self.w_chunk(0, [0, 1]))
        e(f"""
        s_load_dword s{sEP}, s[{sPTR+20}:{sPTR+21}], {OFF_EPOCH}
        s_mov_b32 s{sSA}, s{PPHI}
        s_mov_b32 s{sSA+1}, s{PPHI+1}
        s_mov_b32 s{sWS}, s{sPTR+20}
        s_mov_b32 s{sWS+1}, s{sPTR+21}
        s_lshl_b32 s{sT0}, s{sW}, 8
        s_add_u32 m0, s{sT0}, {KVB + 2048}
        s_lshl_b32 s{sT1}, s{sR}, 10
        s_add_u32 s{sT0}, s{sT0}, s{sT1}
        """)
        self.tok["phi"] = e(f"buffer_load_dword v{vL4}, {sr(sSA)}, s{sT0} offen lds")
        e(f"buffer_load_dword v{vPOLL}, v{self.vWA}, {sr(sSQ)}, s{sROT} offen")
        self.unit_decode()
        e(f"s_getreg_b32 s{sXCC}, hwreg(HW_REG_XCC_ID, 0, 4)")
        self.setup_rest()
        XR = self.vXR
        e(f"""
        v_and_b32 v{vT0}, 0x1f0, v{vL16}
        v_lshlrev_b32 v{vT0}, 3, v{vT0}
        v_lshrrev_b32 v{vC1}, 1, v{vT1}
        v_lshrrev_b32 v{vC2}, 5, v{vT1}
        v_xor_b32 v{vC1}, v{vC1}, v{vC2}
        v_and_b32 v{vC1}, 7, v{vC1}
        v_lshl_add_u32 v{vT0}, v{vC1}, 4, v{vT0}
        s_add_u32 s{sT0}, s{self.sW4K}, {self.XST}
        """)
        for j in range(4):
            e(f"v_xor_b32 v{XR+j}, {j << 5}, v{vT0}")
            e(f"v_add_u32 v{XR+j}, s{sT0}, v{XR+j}")
        RA, PA = 54, 55
        e(f"""
        s_lshl_b32 s{sT0}, s{sW}, 5
        v_xor_b32 v{RA}, s{sT0}, v{vT0}
        s_lshl_b32 s{sT0}, s{sTH}, 13
        s_add_u32 s{sT0}, s{sT0}, {self.XST}
        v_add_u32 v{RA}, s{sT0}, v{RA}
        v_and_b32 v{vT0}, 1, v{vT1}
        v_lshlrev_b32 v{PA}, 9, v{vT0}
        v_lshl_add_u32 v{PA}, v{vC2}, 7, v{PA}
        v_bfe_u32 v{vT0}, v{vT1}, 2, 2
        v_lshl_add_u32 v{PA}, v{vT0}, 5, v{PA}
        v_bfe_u32 v{vT0}, v{vT1}, 4, 1
        v_lshl_add_u32 v{PA}, v{vT0}, 4, v{PA}
        v_bfe_u32 v{vT0}, v{vT1}, 1, 1
        v_lshl_add_u32 v{PA}, v{vT0}, 3, v{PA}
        v_add_u32 v{PA}, {KVB + 2048}, v{PA}
        v_and_b32 v{vT0}, 15, v{vT1}
        v_lshlrev_b32 v{self.vF1}, 3, v{vT0}
        s_and_b32 s{sT0}, s2, 0x87
        v_add_u32 v{self.vF1}, s{sT0}, v{self.vF1}
        v_lshlrev_b32 v{self.vF1}, 7, v{self.vF1}
        """)
        self.run(self.tr_addr([self.vTR, self.vTR+1, self.vTR+2], [0, 1, 2], 0, vT0))
        e(f"v_add_u32 v{vC1}, s{self.sW1K}, v{self.vTR}")
        e(f"v_add_u32 v{vC2}, s{self.sW1K}, v{self.vTR+1}")
        S = vSLAB + 96
        e(f"""
        v_mov_b32 v{S}, -1
        v_mov_b32 v{S+1}, -1
        v_mov_b32 v{S+2}, -1
        v_mov_b32 v{S+3}, -1
        s_mul_i32 s{sLD}, s{sW}, 544
        s_add_u32 s{sLD}, s{sLD}, s{sKVS}
        s_add_u32 s{sLD2}, s{sLD}, {256*KVREC}
        s_mov_b32 exec_hi, 3
        buffer_store_dwordx4 {vr(S)}, v{vL16}, {sr(sWS)}, s{sLD} offen sc1
        buffer_store_dwordx4 {vr(S)}, v{vL16}, {sr(sWS)}, s{sLD2} offen sc1
        s_mov_b64 exec, 1
        buffer_store_dword v{vZ}, v{vZ}, {sr(sWS)}, s{sMYF} offen sc1
        s_mov_b64 exec, -1
        s_mul_i32 s{sTAG}, s{sEP}, 0x9e3779b1
        s_add_u32 s{sTAG}, s{sTAG}, 0x7f4a7c15
        s_mul_i32 s{sTAG2}, s{sEP}, 0x85ebca6b
        s_add_u32 s{sTAG2}, s{sTAG2}, 0xc2b2ae35
        s_and_b32 s{sTAG2}, s{sTAG2}, 0xfffffff0
        s_or_b32 s{sT0}, s{sTAG2}, s{sXCC}
        v_mov_b32 v{self.vTG}, s{sTAG}
        v_mov_b32 v{self.vTG+1}, s{sT0}
        """)
        self.stamp("setup")
        if self.opt.get("g1first", 0): self.run(self.w_chunk(1, [0, 1]) + self.x_chunk(1) + self.w_chunk(2, [0, 1]))
        self.unit_dma()
        self.unit_addr()
        self.stat_addr()
        self.stamp("issued")

    def colsum_out(self, accs, slots):
        g = [[f"s_lshr_b32 s{sT0}, s{sW}, 1", f"s_lshl_b32 s{sT0}, s{sT0}, 9"],
             [f"s_and_b32 s{sT1}, s{sW}, 1", f"s_lshl_b32 s{sT1}, s{sT1}, 3", f"s_add_u32 s{sT0}, s{sT0}, s{sT1}"]]
        for a_, n in zip(accs, slots):
            T = a_ + 2
            g += self.hilo(T, a_, T + 2)
            g += [[f"v_add_u32 v{T+2}, s{sT0}, v{vSLOT + n}"],
                  ["s_mov_b32 exec_hi, 0", f"ds_write_b64 v{T+2}, {vr(T,2)} offset:32768", "s_mov_b64 exec, -1"]]
        return g

    def p1_first(self, AK, AV, ST, post, addr):
        e = self.e
        CK, CV = vACC + 32, vACC + 48
        TR, XR, RA, PA = self.vTR, self.vXR, 54, 55
        grp = lambda c: self.x_chunk(c) + (self.w_chunk(c + 1, [0, 1]) if c < 7 else [])
        last = lambda c: self.tok[f"w1_{c+1}" if c < 7 else "x7"]
        XT, U = vSLAB + 64, vSLAB + 72
        for c in range(8):
            if c == 0:
                e.wait(self.tok["phi"])
            else:
                e.wait(last(c))
            if c == 2: e.wait(self.tok["sst"])
            if e.lg: e("s_waitcnt lgkmcnt(0)")
            e("s_barrier")
            self.run([self.lstamp(f"p1.0 c{c}")] if c in (0, 1, 2, 5) else [])
            if c == 2: self.gflag(OFF_F1, 7)
            if c == (6 if self.opt.get("g1first", 0) else 5): self.gflag(OFF_F2, 3); e(f"s_mov_b32 s{sLD3}, {OFF_F1}")
            for j in range(4):
                e(f"ds_read_b128 {vr(vSLAB + 16*c + 4*j)}, v{XR+j} offset:{(c % 3)*16384}")
            st = []
            if c == 0:
                e(f"ds_read_b128 {vr(XT)}, v{RA}")
                e(f"ds_read_b128 {vr(XT+4)}, v{RA} offset:4096")
                e(f"ds_read_b64_tr_b16 {vr(U+24,2)}, v{PA}")
                e(f"ds_read_b64_tr_b16 {vr(U+26,2)}, v{PA} offset:256")
                fill = []
                for tt in range(2):
                    P = XT + 4*tt
                    fill += [[f"v_permlane32_swap_b32 v{P}, v{P+2}"], [f"v_permlane32_swap_b32 v{P+1}, v{P+3}"]]
                    fill += self.unpack(P, U + 12*tt) + self.stat_part(U + 12*tt, tt) + self.keep(U + 12*tt, tt)
                fill += [[f"v_and_b32 v{XT}, 64, v{vL16}"], [f"v_cmp_eq_u32 vcc, 0, v{XT}"]]
                for k in range(4):
                    fill += [[f"v_cndmask_b32 v{XT}, 0, v{U+24+k}, vcc", f"v_cndmask_b32 v{XT+1}, v{U+24+k}, 0, vcc",
                              f"v_accvgpr_write_b32 a{aPHI+k}, v{XT}", f"v_accvgpr_write_b32 a{aPHI+4+k}, v{XT+1}"]]
                st = [(fill, 0, 9)]
            if c == 1:
                self.run(self.stat_read(0, U) + self.stat_read(1, U + 4) + self.stat_fin(0, U) + self.stat_fin(1, U + 4) + grp(3))
            if c == 6:
                self.tagcheck(vT2, self.vF1, sLD3)
                e(f"""
                s_or_b32 s{sT2}, s{sTAG2}, s{sXCC}
                v_cmp_ne_u32 vcc, s{sT2}, v{vT2+1}
                s_cmp_eq_u64 vcc, 0
                s_cselect_b32 s{sPURE}, 1, 0
                """)
                self.run(self.stats_loads(ST))
                st = [(addr, 0, 9)]
            cs = lambda cc: [(self.trr(vC1, 4*cc, 256), None, CK, cc == 0), (self.trr(vC2, 4*cc, 256), None, CV, cc == 0)]
            seq = cs(0) if c == 0 else (cs(1) if c == 1 else []) + (cs(c + 1) if c < 7 else [])
            ks = list(range(4*c, 4*c + 4))
            if c == 7:
                st = [(self.stats_groups(ST) + post, 0, 5)]
                ks.append(32)
            seq += self.kseq([0, 1], [AK, AV], ks, ([TR, TR+1], 256))
            self.gemm(seq, self.spread(len(seq), *st))
            cu = 2 if self.opt.get("g1first", 0) else 1
            if c == 0: self.run((self.w_chunk(1, [0, 1]) + grp(1) if cu == 1 else []) + grp(2))
            if c == cu:
                self.unit_read(); self.run(grp(c + 3)); self.unit_store()
            elif c in (1, 2, 3): self.run(grp(c + 3))
            if c == 4:
                e(f"s_mov_b32 s{sLD3}, {OFF_F1}")
                e(f"buffer_load_dwordx2 {vr(vT2,2)}, v{self.vF1}, {sr(sWS)}, s{sLD3} offen sc1")
                self.run(grp(7))
            if c == 6:
                self.run(self.colsum_out([CK, CV], [0, 1]))
                for cc in range(8): self.run(self.w_chunk(cc, [2]))
        e(f"s_mov_b32 s{sOUT}, s{sPTR+16}")
        e(f"s_mov_b32 s{sOUT+1}, s{sPTR+17}")
        self.early = False

    vSW, vSR = vT0, vT1
    def stat_addr(self):
        e = self.e
        e(f"s_lshl_b32 s{sT0}, s{sW}, 8")
        e(f"s_add_u32 s{sT0}, s{sT0}, {KVB}")
        e(f"v_add_u32 v{self.vSW}, s{sT0}, v{vL4}")
        e(f"v_add_u32 v{self.vSR}, {KVB}, v{vL4}")
    def x_store(self, P, tt):
        return [[f"s_add_u32 s{sLD2}, s{sXS}, {tt*XTG}"] + self.st2("buffer_store_dwordx4", vr(P), vL16, sLD2) + [self.mark("xst")]]
    def unpack(self, P, U):
        g = []
        for k in range(4):
            g.append([f"v_lshlrev_b32 v{U+2*k}, 16, v{P+k}"])
            g.append([f"v_and_b32 v{U+2*k+1}, 0xffff0000, v{P+k}"])
        return g
    def keep(self, U, tt):
        return [[f"v_accvgpr_write_b32 a{aRES+8*tt+k}, v{U+k}"] for k in range(8)]
    def stat_part(self, U, tt):
        S, Q = U + 8, U + 10
        g = [[pk("v_pk_add_f32", S, U, U+2)], [pk("v_pk_mul_f32", Q, U, U)],
             [pk("v_pk_add_f32", S, S, U+4)], [pk("v_pk_fma_f32", Q, U+2, U+2, Q)],
             [pk("v_pk_add_f32", S, S, U+6)], [pk("v_pk_fma_f32", Q, U+4, U+4, Q)],
             [f"v_add_f32 v{S}, v{S}, v{S+1}"], [pk("v_pk_fma_f32", Q, U+6, U+6, Q)],
             [f"v_add_f32 v{Q}, v{Q}, v{Q+1}"],
             [f"v_permlane32_swap_b32 v{S}, v{Q}"],
             [f"v_add_f32 v{S}, v{S}, v{Q}"],
             [f"ds_write_b32 v{self.vSW}, v{S} offset:{tt*1024}"]]
        return g
    def stat_read(self, tt, T):
        return [[f"ds_read2st64_b32 {vr(T,2)}, v{self.vSR} offset0:{4*tt} offset1:{4*tt+1}"],
                [f"ds_read2st64_b32 {vr(T+2,2)}, v{self.vSR} offset0:{4*tt+2} offset1:{4*tt+3}"]]
    def stat_fin(self, tt, T):
        return [[pk("v_pk_add_f32", T, T, T+2)], [f"v_add_f32 v{T}, v{T}, v{T+1}"],
                [f"s_add_u32 s{sLD2}, s{sXST}, {tt*XTG}", f"s_mov_b64 exec, {sr(sEXQ,2)}"] +
                self.st2("buffer_store_dword", f"v{T}", vL4, sLD2) + [self.mark("sst"), "s_mov_b64 exec, -1"]]

    def stats_loads(self, B):
        return self.gather([(f"v{B+k}", vL4, 32*1024 + 256*k) for k in range(8)], sXW, sLD2, op="buffer_load_dword")
    def stats_groups(self, B):
        return [[pk("v_pk_add_f32", B, B, B+2)], [pk("v_pk_add_f32", B+4, B+4, B+6)], [pk("v_pk_add_f32", B, B, B+4)]] + G(f"""
        v_add_f32 v{B}, v{B}, v{B+1}
        v_mov_b32 v{B+1}, v{B}
        v_permlane32_swap_b32 v{B}, v{B+1}
        v_mul_f32 v{B}, {f2u(-1.0/512)}, v{B}
        v_mul_f32 v{B+1}, {f2u(1.0/512)}, v{B+1}
        v_fma_f32 v{B+1}, -v{B}, v{B}, v{B+1}
        v_cvt_pk_bf16_f32 v{B+2}, v{B}, v{B}
        v_max_f32 v{B+1}, 0, v{B+1}
        v_and_b32 v{B+3}, 0xffff0000, v{B+2}
        v_add_f32 v{B+1}, {f2u(1e-5)}, v{B+1}
        v_sub_f32 v{B+4}, v{B}, v{B+3}
        v_rsq_f32 v{vC1}, v{B+1}
        v_cvt_pk_bf16_f32 v{vMEAN}, v{B+3}, v{B+4}
        v_cvt_pk_bf16_f32 v{vMEAN+1}, v{B+3}, v{B+4}
        v_cvt_pk_bf16_f32 v{vMEAN+2}, v{B+3}, v{B+4}
        v_cvt_pk_bf16_f32 v{vMEAN+3}, v{B+3}, v{B+4}
        v_mul_f32 v{vC2}, v{B+1}, v{vC1}
        """)
    def slab_loads(self, rot=False):
        g = self.gather([(vr(vSLAB + 4*s), vL16, 1024*s) for s in range(32)], sXW, sLD)
        if rot:
            for c in range(8):
                g[4*c] = ([f"s_lshl_b32 s{sROT}, s{sFB}, 12"] if c == 0 else
                          [f"s_add_u32 s{sROT}, s{sROT}, 4096", f"s_and_b32 s{sROT}, s{sROT}, 0x7fff"]) + \
                         [f"s_add_u32 s{sLD}, s{sXW}, s{sROT}", g[4*c][-1]]
        return g

    NR, PF = 5, 4
    def gemm(self, seq, gaps, pre=None):
        e = self.e
        NR, PF = self.NR, self.PF
        toks = {}
        def rd(j):
            d = vWF + 4*(j % NR)
            for op, o, n, base, off in seq[j][0]:
                toks[j] = e(f"{op} {vr(d + o, n)}, v{base} offset:{off}")
        for j in range(min(PF + 1, len(seq))): rd(j)
        if pre: pre()
        for j, (_, b, acc, first) in enumerate(seq):
            if j % 2 == 0 and j > 0:
                e.wait(toks[min(j + 1, len(seq) - 1)], e.pend.get(("v", b)))
            f = vr(vWF + 4*(j % NR))
            ab = f"{f}, {vr(b)}" if b is not None else f"{ar(aONE)}, {f}"
            e(f"v_mfma_f32_32x32x16_bf16 {vr(acc,16)}, {ab}, {'0' if first else vr(acc,16)}")
            if j + PF + 1 < len(seq): rd(j + PF + 1)
            if j < len(gaps): self.run(gaps[j])
        for g in gaps[len(seq):]: self.run(g)
    @staticmethod
    def trr(base, s, second):
        return [("ds_read_b64_tr_b16", 0, 2, base, s*1024), ("ds_read_b64_tr_b16", 2, 2, base, s*1024 + second)]
    def kseq(self, tiles, accs, ksteps, tr=None):
        out = []
        for s in ksteps:
            for i, (t, a) in enumerate(zip(tiles, accs)):
                rd = self.trr(tr[0][i], s, tr[1]) if (tr and s < 32) else [("ds_read_b128", 0, 4, vSLOT + t % 4, s*1024)]
                out.append((rd, vSLAB + 4*s if s < 32 else vMEAN, a, s == 0))
        return out
    def tr_addr(self, regs, slots, L, tmp):
        g = G(f"""
        v_lshrrev_b32 v{tmp}, 9, v{vL16}
        v_lshlrev_b32 v{regs[0]}, {9 if L == 0 else 8}, v{tmp}
        v_and_b32 v{tmp}, 0xc0, v{vL16}
        v_add_u32 v{regs[0]}, v{regs[0]}, v{tmp}
        v_bfe_u32 v{tmp}, v{vL16}, 8, 1
        v_lshl_add_u32 v{regs[0]}, v{tmp}, 5, v{regs[0]}
        v_bfe_u32 v{tmp}, v{vL16}, 4, 2
        v_lshl_add_u32 v{regs[0]}, v{tmp}, 3, v{regs[0]}
        """)
        for r, n in list(zip(regs, slots))[::-1]:
            g.append([f"v_add_u32 v{r}, {(n % 4) * TILE}, v{regs[0]}"])
        return g

    @staticmethod
    def cost(g):
        c = 0
        for x in g:
            if callable(x): c += 1
            elif x.endswith(":"): pass
            elif x.startswith(TRANS) or x.startswith(("v_permlane", "buffer", "global", "s_cbranch")): c += 2
            else: c += 1
        return c
    @classmethod
    def spread(cls, n, *streams):
        gaps = [[] for _ in range(n)]
        load = [1 + (j % 2) for j in range(n)]
        for st in streams:
            groups, a, b = st[:3]
            b = min(b, n - 1)
            if len(st) > 3:
                for i, g in enumerate(groups):
                    j = a + (i * (b - a + 1)) // max(len(groups), 1)
                    gaps[j].append(g); load[j] += cls.cost(g)
                continue
            tot = sum(cls.cost(g) for g in groups)
            target = (tot + sum(load[a:b+1])) / (b - a + 1)
            i, placed, ex = 0, 0, 0
            for j in range(a, b + 1):
                ex += load[j]
                while i < len(groups) and (j == b or placed + cls.cost(groups[i]) / 2 <= target * (j - a + 1) - ex):
                    gaps[j].append(groups[i]); c = cls.cost(groups[i]); placed += c; load[j] += c; ex += 0; i += 1
        return gaps

    def softmax_groups(self, P, EP, EN, dst_of):
        g = []
        MX, MN, C = vT0, vT1, 58
        S1, S2 = 54, 56
        g.append([f"v_max3_f32 v{MX}, v{P}, v{P+1}, v{P+2}"])
        g.append([f"v_min3_f32 v{MN}, v{P}, v{P+1}, v{P+2}"])
        for k in range(3, 15, 2):
            g.append([f"v_max3_f32 v{MX}, v{MX}, v{P+k}, v{P+k+1}"])
            g.append([f"v_min3_f32 v{MN}, v{MN}, v{P+k}, v{P+k+1}"])
        g.append([f"v_max_f32 v{MX}, v{MX}, v{P+15}"])
        g.append([f"v_min_f32 v{MN}, v{MN}, v{P+15}"])
        g.append([pk("v_pk_mul_f32", MX, MX, ("b", C))])
        halves = []
        for E_, M_, S_, ng, sg in ((EP, MX, S1, [0, 0, 1], 0), (EN, MN, S2, [1, 0, 0], 1)):
            h = [[pk("v_pk_fma_f32", E_+k, P+k, ("b", C), ("b", M_), neg=ng)] for k in range(0, 16, 2)]
            h += [[f"v_exp_f32 v{E_+k}, v{E_+k}"] for k in range(16)]
            h.append([pk("v_pk_add_f32", S_, E_, E_+2)])
            h += [[pk("v_pk_add_f32", S_, S_, E_+k)] for k in range(4, 16, 2)]
            h.append([f"v_add_f32 v{S_}, v{S_}, v{S_+1}"])
            h.append([f"v_rcp_f32 v{S_}, v{S_}"])
            h += [[pk("v_pk_mul_f32", E_+k, E_+k, ("b", S_))] for k in range(0, 16, 2)]
            h += [[f"v_cvt_pk_bf16_f32 v{dst_of(sg,k)}, v{E_+2*k}, v{E_+2*k+1}"] for k in range(8)]
            halves.append(h)
        return g, halves[0], halves[1]

    def phi_groups(self, ACC, P, T):
        return ([[f"v_cvt_pk_bf16_f32 v{T+k}, v{ACC+2*k}, v{ACC+2*k+1}"] for k in range(8)] +
                [[f"v_mfma_f32_32x32x16_bf16 {vr(P,16)}, {ar(aPHI)}, {vr(T)}, 0"],
                 [f"v_mfma_f32_32x32x16_bf16 {vr(P,16)}, {ar(aPHI+4)}, {vr(T+4)}, {vr(P,16)}"]])

    def slab_phase(self, name, xphase, tiles, accs, ST, post, extra, tr=None):
        e = self.e
        nt = len(tiles)
        sl, stl = self.slab_loads(rot=bool(tr)), self.stats_loads(ST)
        LA = self.opt.get("la0", 7)
        fl2, ph2 = self.flag_group(None)
        assert ph2 == xphase + 1
        e("s_barrier")
        def pre():
            self.spin(vPX, sLF, xphase)
            self.stamp(f"{name} go")
            self.run(sl[:LA] + [fl2])
        km = self.opt.get("kmean", 31)
        ks = list(range(km)) + [32] + list(range(km, 32))
        seq = self.kseq(tiles, accs, ks, tr)
        gp, gc = self.opt.get("sgp", 10), self.opt.get("sgc", 24)
        self.slab_end = 2 * (32 - LA)
        streams = [(sl[LA:], 0, 2 * (32 - LA) - 1, 1), ([self.soft_issue(vPX, sLF)], gp, gp),
                   ([self.soft_check(vPX, sLF, ph2)], gc, gc), (stl, gc + 1, gc + 12, 1),
                   (self.stats_groups(ST) + post, km*nt - 13, km*nt - 3)] + extra
        streams += [([self.lstamp(f"{name} g{j}")], j, j, 1) for j in (0, 19, 40)]
        return seq, streams, pre

    def p1(self, L, xphase):
        e = self.e
        n0 = 10 * L
        AK, AV, AQ, AP = vACC, vACC+16, vACC+32, vACC+48
        ST = 54
        A1, A2, A3, A4, A5 = 40, 41, 42, 43, 44
        TR = self.vTR
        trd = 256 if L == 0 else 512
        addr = G(f"""
        v_and_b32 v{A1}, 0x1f0, v{vL16}
        v_lshlrev_b32 v{A1}, 1, v{A1}
        s_lshl_b32 s{sT0}, s{sW}, 10
        s_add_u32 s{sT0}, s{sT0}, {SCR}
        v_add_u32 v{A1}, s{sT0}, v{A1}
        v_lshrrev_b32 v{A3}, 9, v{vL16}
        v_lshl_add_u32 v{A2}, v{A3}, 4, v{A1}
        v_lshl_add_u32 v{A1}, v{A3}, 13, v{A1}
        v_lshrrev_b32 v{A3}, 1, v{vL16}
        s_lshl_b32 s{sT0}, s{sW}, 12
        s_add_u32 s{sT0}, s{sT0}, {SCR}
        s_lshr_b32 s{sT1}, s{sW}, 1
        s_lshl_b32 s{sT1}, s{sT1}, 12
        s_add_u32 s{sT1}, s{sT1}, {SCR + 16384}
        v_add_u32 v{A4}, s{sT1}, v{A3}
        v_add_u32 v{A3}, s{sT0}, v{A3}
        s_lshl_b32 s{sT0}, s{sW}, 9
        v_add_u32 v{A5}, s{sT0}, v{vL16}
        s_lshl_b32 s{sT0}, s{sW}, 5
        s_add_u32 s{sT0}, s{sT0}, 2048
        s_add_u32 s{sT1}, s{sT0}, 16
        v_writelane_b32 v{A5}, s{sT0}, 32
        v_writelane_b32 v{A5}, s{sT1}, 48
        s_add_u32 s{sT5}, s{sKVS}, {L*256*KVREC}
        """)
        post = [[f"v_mul_f32 v58, {f2u(LOG2E)}, v{vC1}"]]
        if L == 0:
            self.p1_first(AK, AV, ST, post, addr)
        else:
            self.run(self.tr_addr([TR, TR+1, TR+2], [n0, n0+1, n0+2], 1, vT0))
            seq, st, pre = self.slab_phase(f"p1.{L}", xphase, [n0, n0+1], [AK, AV], ST, post,
                                      [(addr, 2, 46), ([self.touch(sOS, 0, 16, 53)], 58, 58)], ([TR, TR+1], trd))
            self.gemm(seq, self.spread(66, *st), pre)
        self.stamp(f"p1.{L} kv gemm")
        T, VP = vWF, vWF + 8
        PK = AQ
        code = self.phi_groups(AK, AP, T)
        code += [[pk("v_pk_mul_f32", AV+k, AV+k, ("b", vC1))] for k in range(0, 16, 2)]
        code += [[f"v_cvt_pk_bf16_f32 v{VP+k}, v{AV+2*k}, v{AV+2*k+1}"] for k in range(8)]
        code += G(f"""
        ds_write_b128 v{A2}, {vr(VP)} offset:16384
        ds_write_b128 v{A2}, {vr(VP+4)} offset:{16384+4096}
        """)
        sm, pos, neg = self.softmax_groups(AP, AK, AV, lambda sg, k: PK + 8*sg + k)
        code += sm + pos
        code += G(f"""
        ds_write_b128 v{A1}, {vr(PK)}
        ds_write_b128 v{A1}, {vr(PK+4)} offset:16
        """)
        code += neg[:-4] + [[f"ds_write_b128 v{A1}, {vr(PK+8)} offset:4096"]] + neg[-4:] + [[f"ds_write_b128 v{A1}, {vr(PK+12)} offset:{4096+16}"]]
        if L == 0:
            bg = [self.touch(sOS, 0, 16, 46), self.touch(sXS, 0, 8, 47), self.touch(sXS, XTG, 8, 48)]
            self.run(code[:10] + bg + code[10:])
        else:
            bg = self.dma(n0 + 4)
            self.run(code[:10] + [["s_barrier"]] + bg[:4] + code[10:28] + bg[4:6] + code[28:] + bg[6:])
        e("s_waitcnt lgkmcnt(0)")
        e("s_barrier")
        FA, FB = AK, AV
        for s in range(4):
            for hf in range(2):
                e(f"ds_read_b64_tr_b16 {vr(FA+4*s+2*hf,2)}, v{A3} offset:{s*1024+hf*512}")
                e(f"ds_read_b64_tr_b16 {vr(FB+4*s+2*hf,2)}, v{A4} offset:{s*1024+hf*512}")
        KV, ZZ, GR = AP, AP + 4, AP + 8
        for s in range(4):
            e(f"v_mfma_f32_16x16x32_bf16 {vr(ZZ)}, {vr(FA+4*s)}, {ar(aONE)}, {'0' if s == 0 else vr(ZZ)}")
            e(f"v_mfma_f32_16x16x32_bf16 {vr(KV)}, {vr(FA+4*s)}, {vr(FB+4*s)}, {'0' if s == 0 else vr(KV)}")
        e(f"""
        v_cvt_pk_bf16_f32 v{GR+2}, v{ZZ}, v{ZZ+1}
        v_cvt_pk_bf16_f32 v{GR+3}, v{ZZ+2}, v{ZZ+3}
        v_cvt_pk_bf16_f32 v{GR}, v{KV}, v{KV+1}
        v_cvt_pk_bf16_f32 v{GR+1}, v{KV+2}, v{KV+3}
        v_permlane32_swap_b32 v{GR}, v{GR+2}
        v_permlane32_swap_b32 v{GR+1}, v{GR+3}
        v_min_u32 v{GR}, -2, v{GR}
        v_min_u32 v{GR+3}, -2, v{GR+3}
        s_mov_b32 exec_hi, 0x00010001
        buffer_store_dwordx4 {vr(GR)}, v{A5}, {sr(sWS)}, s{sT5} offen sc1
        s_mov_b64 exec, -1
        """)
        self.stamp(f"p1.{L} kv pub")
        KP = vSLAB + 64
        ZP = KP + 32
        B1, B2, B3 = A3, A4, A5
        addr = G(f"""
        v_lshrrev_b32 v{A1}, 9, v{vL16}
        v_mul_u32_u24 v{A1}, {KVREC}, v{A1}
        v_and_b32 v{A2}, 0x1f0, v{vL16}
        v_add_u32 v{A1}, v{A1}, v{A2}
        s_lshl_b32 s{sT0}, s{sW}, 9
        v_add_u32 v{A1}, s{sT0}, v{A1}
        s_add_u32 s{sT1}, s{sT0}, {KVB}
        v_add_u32 v{B2}, s{sT1}, v{A2}
        v_bfe_u32 v{A2}, v{vL16}, 4, 4
        v_mul_u32_u24 v{A2}, {KVREC}, v{A2}
        v_bfe_u32 v{vT0}, v{vL16}, 8, 1
        v_lshl_add_u32 v{A2}, v{vT0}, 4, v{A2}
        s_lshl_b32 s{sT0}, s{sW}, 5
        s_add_u32 s{sT0}, s{sT0}, 2048
        v_add_u32 v{A2}, s{sT0}, v{A2}
        v_and_b32 v{B1}, 0x130, v{vL16}
        v_bfe_u32 v{vT0}, v{vL16}, 6, 1
        v_lshl_add_u32 v{B1}, v{vT0}, 7, v{B1}
        v_bfe_u32 v{vT0}, v{vL16}, 7, 1
        v_lshl_add_u32 v{B1}, v{vT0}, 6, v{B1}
        v_lshrrev_b32 v{vT0}, 9, v{vL16}
        v_lshl_add_u32 v{B1}, v{vT0}, 3, v{B1}
        v_add_u32 v{B1}, s{sT1}, v{B1}
        v_and_b32 v{B3}, 0xf0, v{vL16}
        v_lshl_add_u32 v{B3}, v{vT0}, 10, v{B3}
        v_add_u32 v{B3}, {KVB}, v{B3}
        """)
        def kvg():
            return self.gather([(vr(ZP), A2, L*256*KVREC)] + [(vr(KP+4*i), A1, L*256*KVREC + 2*i*KVREC) for i in range(8)], sKVL, sLD)
        OA, OZ = vSLAB + 100, vWF
        kg = kvg()
        nin = self.opt.get("kvin", 9)
        seq = self.kseq([n0+2], [AQ], range(33), ([TR+2], trd))
        st, o = [], 0
        if L == 0:
            e(f"""
            v_add_u32 v{TR}, s{self.sW1K}, v{TR+2}
            v_lshrrev_b32 v{TR+1}, 1, v{vL16}
            s_lshl_b32 s{sT5}, s{sW}, 9
            s_add_u32 s{sT5}, s{sT5}, {OFF_F2}
            buffer_load_dwordx2 {vr(vT2,2)}, v{TR+1}, {sr(sWS)}, s{sT5} offen sc1
            """)
            e.wait(self.tok["w2_7"])
            e("s_barrier")
            seq = [(self.trr(TR, 4*c, trd), None, AK, c == 0) for c in range(8)] + seq
            o = 8
            k = self.opt.get("f2at", 14)
            st = [(self.colsum_out([AK], [2]), o + 3, o + 10),
                  ([[lambda tok: self.tagcheck(vT2, TR + 1, sT5), "s_waitcnt lgkmcnt(0)", "s_barrier"]], o + k, o + k, 1),
                  (self.dma(3), o + k + 1, o + 24, 1), (kg[:nin], o + 25, o + 32, 1), (addr, o + k + 1, o + 24),
                  (self.park(0, 0, 60, False) + self.park(1, 1, 60, False), 0, o + k - 1)]
        else:
            st = [(self.dma(n0 + 5), 0, self.opt.get("w3end", 16), 1), (kg[:nin], 25, 32, 1), (addr, 1, 24)]
        self.gemm(seq, self.spread(len(seq), *st))
        PQ = AQ
        def pq_dst(sg, k): return PQ + 8*sg + 4*((k >> 1) & 1) + (k & 1) + 2*(k >> 2)
        sm, pos, neg = self.softmax_groups(AP, AK, AV, pq_dst)
        zero = lambda b: [[pk("v_pk_mul_f32", b+k, ("b", vZ), ("b", vZ))] for k in range(0, 16, 2)]
        self.run(zero(OA) + self.phi_groups(AQ, AP, vWF) + kg[nin:] + zero(OZ) + sm + pos + neg)
        self.stamp(f"p1.{L} q done")
        def retry(Lback, groups):
            self.slow()
            for g in groups:
                for x in g: e.raw("    " + x)
            for x in f"""s_add_u32 s{sSPIN}, s{sSPIN}, 1
            s_cmp_gt_u32 s{sSPIN}, 0x80000
            s_cbranch_scc1 L_fail
            s_waitcnt vmcnt(0)
            s_branch {Lback}""".split("\n"): e.raw("    " + x.strip())
        Lz, Lzok, Lk, Lok = [e.label("KV") for _ in range(4)]
        e(f"s_mov_b32 s{sSPIN}, 0")
        e.place(Lz)
        e(f"v_max_u32 v{vT0}, v{ZP}, v{ZP+3}")
        e(f"v_cmp_eq_u32 vcc, -1, v{vT0}")
        e(f"s_cbranch_vccz {Lzok}")
        retry(Lz, kvg())
        e.place(Lzok)
        WO = vSLAB
        wo = self.gather([(vr(WO + 8*ks + 4*ft), vLX2 if ft else vLX, 2048*ks) for ks in range(8) for ft in range(2)],
                         sWO_, sLD3, flags="")
        w1, w2, w3 = self.opt.get("wo", (3, 6, 10))
        NUM, DEN = AP, AK
        e(f"""
        s_mov_b32 exec_hi, 0
        ds_write_b128 v{B2}, {vr(ZP)} offset:2048
        s_mov_b64 exec, -1
        """)
        self.run(wo[:w1])
        e(f"""
        s_waitcnt lgkmcnt(0)
        s_barrier
        s_mov_b32 exec_lo, 0x0000ffff
        s_mov_b32 exec_hi, 0xffff0000
        """)
        for s in range(4): e(f"ds_read_b128 {vr(OZ+4*s)}, v{B3} offset:{2048+s*256}")
        e("s_mov_b64 exec, -1")
        for s in range(4):
            e(f"v_mfma_f32_32x32x16_bf16 {vr(DEN,16)}, {vr(OZ+4*s)}, {vr(PQ+4*s)}, {'0' if s == 0 else vr(DEN,16)}")
            if w1 + s < w2: self.run([wo[w1 + s]])
        self.run(wo[min(w1 + 4, w2):w2])
        e.place(Lk)
        KV, GR = AV, AV + 4
        for i in range(8):
            e(f"v_mfma_f32_16x16x32_bf16 {vr(KV)}, {ar(aSEL)}, {vr(KP+4*i)}, {'0' if i == 0 else vr(KV)}")
            e(f"v_max_u32 v{vT0}, v{KP}, v{KP+3}" if i == 0 else f"v_max3_u32 v{vT0}, v{vT0}, v{KP+4*i}, v{KP+4*i+3}")
        e(f"v_cmp_eq_u32 vcc, -1, v{vT0}")
        e(f"s_cbranch_vccz {Lok}")
        retry(Lk, kvg())
        e.place(Lok)
        self.stamp(f"p1.{L} kv got")
        e(f"""
        v_cvt_pk_bf16_f32 v{GR}, v{KV}, v{KV+1}
        v_cvt_pk_bf16_f32 v{GR+1}, v{KV+2}, v{KV+3}
        ds_write_b64 v{B1}, {vr(GR,2)}
        """)
        for hd in range(2):
            D = DEN + 8*hd
            e(pk("v_pk_add_f32", D, D, D+2)); e(pk("v_pk_add_f32", D+4, D+4, D+6))
        for hd in range(2):
            D = DEN + 8*hd
            e(pk("v_pk_add_f32", D, D, D+4))
        e(f"""
        v_add_f32 v{DEN}, v{DEN}, v{DEN+1}
        v_add_f32 v{DEN+8}, v{DEN+8}, v{DEN+9}
        s_waitcnt lgkmcnt(0)
        s_barrier
        s_mov_b32 exec_lo, 0x0000ffff
        s_mov_b32 exec_hi, 0xffff0000
        """)
        for s in range(4): e(f"ds_read_b128 {vr(OA+4*s)}, v{B3} offset:{s*256}")
        e(f"""
        s_mov_b64 exec, -1
        v_permlane32_swap_b32 v{DEN}, v{DEN+8}
        v_add_f32 v{DEN}, v{DEN}, v{DEN+8}
        v_add_f32 v{DEN}, {f2u(1e-6)}, v{DEN}
        v_rcp_f32 v{DEN}, v{DEN}
        v_mov_b32 v{DEN+8}, v{DEN}
        v_permlane32_swap_b32 v{DEN}, v{DEN+8}
        """)
        for s in range(4):
            e(f"v_mfma_f32_32x32x16_bf16 {vr(NUM,16)}, {vr(OA+4*s)}, {vr(PQ+4*s)}, {'0' if s == 0 else vr(NUM,16)}")
            if w2 + s < w3: self.run([wo[w2 + s]])
        self.run(wo[min(w2 + 4, w3):w3])
        for hd in range(2):
            for k in range(0, 8, 2): e(pk("v_pk_mul_f32", NUM+8*hd+k, NUM+8*hd+k, ("b", DEN+8*hd)))
            for k in range(4): e(f"v_cvt_pk_bf16_f32 v{40+4*hd+k}, v{NUM+8*hd+2*k}, v{NUM+8*hd+2*k+1}")
            self.run([self.st2("buffer_store_dwordx4", vr(40+4*hd), vL16, sOS, hd*1024) + [self.mark("ost")]])
        fl, ph = self.flag_group("ost")
        self.run(wo[w3:] + self.splitk_init(range(2)) + [fl])
        self.stamp(f"p1.{L} o pub")
        return ph

    SACC = [vACC, vACC+16, vACC+32, vACC+48]
    def splitk_init(self, tts):
        g = []
        for tt in tts:
            a_ = self.SACC[2*tt]
            g += [[f"v_accvgpr_read_b32 v{a_+k}, a{aRES+8*tt+k}"] for k in range(8)]
            g += [[pk("v_pk_mul_f32", a_+k, ("b", vZ), ("b", vZ))] for k in range(8, 16, 2)]
        return g
    def splitk_addr(self, last):
        AW, AR = vMEAN, vMEAN + 3
        g = []
        for q in range(1, 4):
            g += [[f"s_xor_b32 s{sT0}, s{sW}, {q}", f"s_mul_i32 s{sT0}, s{sT0}, 6144",
                   f"s_add_u32 s{sT0}, s{sT0}, {SCR + (q-1)*2048}", f"v_add_u32 v{AW+q-1}, s{sT0}, v{vL16}"]]
        g += [[f"s_mul_i32 s{sT0}, s{sW}, 6144", f"s_add_u32 s{sT0}, s{sT0}, {SCR}", f"v_add_u32 v{AR}, s{sT0}, v{vL16}"]]
        if last: g += self.row_addr(vC1, vC2)
        else: g += [[lambda tok: self.stat_addr()]]
        return g

    def splitk(self, name, order, wreg, areg, ld, extra, last=False):
        e = self.e
        acc = self.SACC
        AW, AR = vMEAN, vMEAN + 3
        RB, PKD, SF = vWF, vWF + 24, vWF + 28
        def red_write(tt):
            return [[f"ds_write_b128 v{AW+q-1}, {vr(acc[2*tt] + 8*q + 4*hf)} offset:{hf*1024}"] for q in (2, 3, 1) for hf in range(2)]
        def red_read():
            return [[f"ds_read_b128 {vr(RB + 4*j)}, v{AR} offset:{j*1024}"] for j in range(6)]
        def red_fin(tt):
            O = acc[2*tt]
            g = [[pk("v_pk_add_f32", O+k, O+k, RB+8*q+k)] for q in range(3) for k in range(0, 8, 2)]
            g += [[f"v_cvt_pk_bf16_f32 v{PKD+k}, v{O+2*k}, v{O+2*k+1}"] for k in range(4)]
            if last:
                g.append([f"v_permlane32_swap_b32 v{PKD}, v{PKD+2}"])
                g.append([f"v_permlane32_swap_b32 v{PKD+1}, v{PKD+3}"])
                g.append([f"s_add_u32 s{sLD2}, s{sOUTO}, {tt*32768}",
                          f"buffer_store_dwordx4 {vr(PKD)}, v{vC1}, {sr(sOUT)}, s{sLD2} offen"])
                return g, []
            g += self.x_store(PKD, tt) + self.stat_part(O, tt)
            return g, self.unpack(PKD, O + 16) + self.keep(O + 16, tt)
        BAR = [["s_waitcnt lgkmcnt(0)", "s_barrier"]]
        lastA = max(j for j, (tt, ks) in enumerate(order) if tt == 0)
        if len(order) > 16:
            side1 = [[], []] + [x for w in red_write(0) for x in (w, [])] + [[], []] + BAR + red_read() + [[], []] + BAR
        else:
            side1 = [[]] + red_write(0) + [[], [], []] + BAR + red_read() + [[]] + BAR
        f0, k0 = red_fin(0)
        side2 = f0 + k0
        seen = set()
        s1 = s2 = 0
        for j, (tt, ks) in enumerate(order):
            self.run(ld[j] if j < len(ld) else [])
            for ft in (1, 0):
                c = "0" if (tt not in seen and ft == 1) else vr(acc[2*tt+ft], 16)
                e(f"v_mfma_f32_32x32x16_bf16 {vr(acc[2*tt+ft],16)}, {wreg(ks, ft)}, {areg(j)}, {c}")
                if j > lastA:
                    if s1 < len(side1):
                        k = 2 if side1[s1] and side1[s1][0].startswith("ds_read") else 1
                        self.run(side1[s1:s1+k]); s1 += k
                    else:
                        self.run(side2[s2:s2+4]); s2 += 4
            seen.add(tt)
            self.run(extra[j] if j < len(extra) else [])
        self.run(side1[s1:])
        self.stamp(f"{name} gemm")
        rest = side2[s2:]
        self.run(mix(rest, red_write(1), lead=min(8, len(rest))) if rest else red_write(1))
        f1, k1 = red_fin(1)
        if last:
            self.run(BAR + red_read() + f1)
            return None
        fl, ph = self.flag_group("xst")
        self.run(BAR + red_read() + f1 + k1[:8] + BAR + self.stat_read(0, SF) + self.stat_read(1, SF + 4) + k1[8:] + [fl] +
                 self.stat_fin(0, SF) + self.stat_fin(1, SF + 4))
        self.stamp(f"{name} pub")
        return ph

    def p2(self, L, phase):
        e = self.e
        self.spin(vPO, sLF, phase)
        self.stamp(f"p2.{L} go")
        order = [(tt, ks) for tt in range(2) for ks in range(8)]
        AB = vSLAB + 64
        g = self.gather([(vr(AB + 4*j), vL16, tt*32768 + ks*1024) for j, (tt, ks) in enumerate(order)], sOL, sLD)
        LA = self.opt.get("la2", 6)
        ld = [g[:LA+1] + self.splitk_addr(False)] + [[x] for x in g[LA+1:]]
        extra = [[] for _ in order]
        if L == 0:
            for i, x in enumerate(self.park(2, 2, 56, False)): extra[i // 2].append(x)
        for i, x in enumerate(self.dma(4 if L == 0 else 16)): extra[min(15, 16 - LA + (i * LA) // 9)].append(x)
        return self.splitk(f"p2.{L}", order, lambda ks, ft: vr(vSLAB + 8*ks + 4*ft), lambda j: vr(AB + 4*j), ld, extra)

    def p4_order(self, L):
        early = [7*j + self.tau(L, i) for j in range(4) for i in range(4)]
        late = [7*j + self.tau(L, i) for j in range(4) for i in (4, 5, 6)]
        early.sort(); late.sort()
        nb = self.opt.get("p4nb", 14)
        return ([(0, k) for k in early] + [(1, k) for k in early[:nb]] + [(0, k) for k in late] +
                [(1, k) for k in early[nb:]] + [(1, k) for k in late]), 16 + nb
    def p4_loads(self, L):
        order, _ = self.p4_order(L)
        return self.gather([(vr(vSLAB + 4*(j % 16)), vL16, tt*112*1024 + ks*1024) for j, (tt, ks) in enumerate(order)], sHL, sLD)
    def wd_loads(self):
        order, _ = self.p4_order(0)
        ksl = [ks for tt, ks in order if tt == 0]
        return self.gather([(self.wdreg(ks, ft), vLX2 if ft else vLX, 2048*ks) for ks in ksl for ft in range(2)],
                           sWD_, sLD3, flags="")
    def wdreg(self, ks, ft):
        order, _ = self.p4_order(0)
        p = 2 * [k for tt, k in order if tt == 0].index(ks) + ft
        return ar(4*p if p < 31 else 4*p + 4 if p < 55 else 124)
    @property
    def P4LA(self): return self.opt.get("la4", 10)
    def p4(self, L, ph):
        pha, phb, flb, wd = ph
        order, nlate = self.p4_order(L)
        g = self.p4_loads(L)
        LA = self.P4LA
        ld = [[x] for x in g[LA:]]
        extra = [[] for _ in order]
        init = self.splitk_init([1]) + self.splitk_addr(L == 1)
        for i, x in enumerate(init[:12]): extra[i].append(x)
        for i, x in enumerate(init[12:]): extra[22 + i].append(x)
        extra[self.opt.get("p4flag", 7 if L == 0 else 5)].append(flb)
        jl = nlate - LA
        extra[jl - self.opt.get("p4poll", 8)].append(self.soft_issue(vPO, sLF))
        ld[jl].insert(0, self.soft_check(vPO, sLF, phb))
        for j in range(7, 56, 7): extra[j].append(self.lstamp(f"p4.{L} s{j}"))
        for i, x in enumerate(wd): ld[i // 2].append(x)
        j0 = (len(wd) + 1) // 2
        if L == 0: assert 56 - len(wd) <= 31 and (47 - (56 - len(wd))) // 2 > 11
        if L == 0:
            nxt = [self.touch(sXS, 0, 8, 56), self.touch(sXS, XTG, 8, 57), self.touch(sXST, 0, 2, 58), self.touch(sXST, XTG, 2, 59),
                   self.code_touch("L_layer1", "L_end", 60)]
            for i, x in enumerate(nxt): extra[j0 + 2*i].append(x)
            for i, x in enumerate(self.park(12, 2, 54, True)): extra[i].append(x)
        return self.splitk(f"p4.{L}", order, self.wdreg, lambda j: vr(vSLAB + 4*(j % 16)),
                           ld, extra, last=(L == 1))

    def glu_groups(self, L, ACC, i, packed=False):
        PKD, T = 40, 44
        tau = self.tau(L, i)
        plain = L == 1 and i >= self.opt.get("hplain", 5)
        st = [f"s_add_u32 s{sLD2}, s{sHS}, {tau*1024}"] + (
            self.st2("buffer_store_dwordx4", vr(PKD), vL16, sLD2) if plain else
            [f"buffer_store_dwordx4 {vr(PKD)}, v{vL16}, {sr(sWS)}, s{sLD2} offen sc1"]) + [self.mark("hst")]
        if packed:
            g = [[pk("v_pk_mul_f32", T+k, ACC+k, ("b", vC1))] for k in range(0, 8, 2)]
            g += [[f"v_exp_f32 v{T+k}, v{T+k}"] for k in range(8)]
            g += [[pk("v_pk_fma_f32", T+k, T+k, ("b", vC2), ("b", vC2))] for k in range(0, 8, 2)]
            g += [[f"v_rcp_f32 v{T+k}, v{T+k}"] for k in range(8)]
            g += [[pk("v_pk_mul_f32", T+k, T+k, ACC+8+k)] for k in range(0, 8, 2)]
            g += [[f"v_cvt_pk_bf16_f32 v{PKD+k}, v{T+2*k}, v{T+2*k+1}"] for k in range(4)]
            return g + [st]
        ops = []
        for k in range(8):
            ops += [(k, 0, f"v_mul_f32 v{T+k}, v{ACC+k}, v{vC1}"), (k+1, 1, f"v_exp_f32 v{T+k}, v{T+k}"),
                    (k+2, 2, f"v_fma_f32 v{T+k}, v{T+k}, v{vC2}, v{vC2}"), (k+3, 3, f"v_rcp_f32 v{T+k}, v{T+k}"),
                    (k+4, 4, f"v_mul_f32 v{T+k}, v{T+k}, v{ACC+8+k}")]
            if k % 2: ops.append((k+5, 5, f"v_cvt_pk_bf16_f32 v{PKD+k//2}, v{T+k-1}, v{T+k}"))
        ops.sort(key=lambda o: (o[0], o[1]))
        return [[o[2]] for o in ops] + [st]

    def p3(self, L, xphase):
        e = self.e
        n0 = 10 * L + 3
        nf = 2 if L == 0 else self.opt.get("nf", 2)
        aset = [vACC + 16*i for i in (0, 1, 2, 3, 0, 2, 3)] if nf == 2 else [vACC + 16*i for i in (0, 1, 2, 3, 0, 2, 3)]
        ST = 52
        post = [[f"v_mul_f32 v{vC1}, {f2u(-LOG2E)}, v{vC1}"]]
        seq, streams, pre = self.slab_phase(f"p3.{L}", xphase, [n0 + i for i in range(nf)], aset[:nf], ST, post, [])
        n1 = 33 * nf
        BAR = lambda n: [self.waitfor(f"tile{n}") + ["s_barrier"]]
        wd = self.wd_loads() if L == 0 else []
        if L == 0:
            streams.append((self.dma(n0 + 2), self.slab_end, 59, 1))
            streams.append((self.dma(n0 + 3) + BAR(n0 + 2), n1 - self.PF - 2, n1 - self.PF - 2, 1))
        elif nf == 3:
            pass

        if nf == 2: epis = {2: [0, 1], 3: [2], 4: [3], 5: [4], 6: [5]}
        else: epis = {3: [0, 1], 4: [2, 3], 5: [4], 6: [5]}
        pha = None
        late = []
        b0 = n1
        for i in range(nf, 7):
            seq += self.kseq([n0 + i], [aset[i]], range(33))
            mem = []
            if nf == 2:
                if i <= 4: mem = [(self.dma(n0 + i + 2), b0 + 1, b0 + 26, 1)]
                else:
                    k = self.opt.get("nwd", 14) if i == 5 else self.opt.get("nwd6", 6)
                    mem = [(wd[:k], b0, b0 + (30 if i == 5 else 13), 1)]; wd = wd[k:]
            else:
                if i == nf: mem = [([["s_barrier"]], b0 + 1, b0 + 1, 1), (self.dma(n0 + 4), b0 + 2, b0 + 12, 1), (self.dma(n0 + 5), b0 + 14, b0 + 32, 1)]
                elif i == nf + 1: mem = [(self.dma(n0 + 6), b0 + 4, b0 + 26, 1)]
            if (nf == 2 and i == 2) or (L == 0 and i == 6): mem = [([["s_barrier"]], b0, b0, 1)] + mem
            streams += mem
            if L == 0 and i >= 5: streams.append((self.park(5 + i, i - 5, 52, True), b0 + 1, b0 + 24, 1))
            if L == 1 and i + 1 >= self.opt.get("hplain", 5) and i < 6:
                streams.append(([self.touch(sHS, self.tau(L, i + 1) * 1024, 8, 60 + i % 2)], b0 + 29, b0 + 29, 1))
            streams.append(([self.lstamp(f"p3.{L} t{i}")], b0 - 1, b0 - 1, 1))
            if i < 6: streams.append((BAR(n0 + i + 1), b0 + 33 - self.PF - 2, b0 + 33 - self.PF - 2, 1))
            if i == 5:
                fla, pha = self.flag_group("hst3")
                streams.append(([fla], b0 + self.opt.get("fla", 18), b0 + self.opt.get("fla", 18), 1))
            if i == 6:
                streams.append(([self.soft_issue(vPO, sLF)], b0 + 1, b0 + 1, 1))
                streams.append(([self.soft_check(vPO, sLF, pha)] + self.p4_loads(L)[:self.P4LA], b0 + 15, b0 + 25, 1))
                late.append((self.splitk_init([0]), b0 + 2, b0 + 32))
            epi = []
            for t in epis[i]:
                epi += self.glu_groups(L, aset[t], t)
                if t == 3: epi[-1].append(self.mark("hst3"))
            late.append((epi, b0 + 3, b0 + (23 if (i == 4 and len(epis[i]) == 1) else 31)))
            b0 += 33
        self.gemm(seq, self.spread(len(seq), *(streams + late)), pre)
        self.stamp(f"p3.{L} gemm")
        self.run(self.glu_groups(L, aset[6], 6, packed=True))
        flb, phb = self.flag_group("hst")
        self.stamp(f"p3.{L} pub")
        return pha, phb, flb, wd

    def build(self):
        e = self.e
        self.startup()
        ph = 0
        steps = 0
        for L in range(2):
            if L == 1: e.place("L_layer1")
            for f in (self.p1, self.p2, self.p3, self.p4):
                if self.stop is not None and steps >= self.stop: break
                ph = f(L, ph)
                steps += 1
        self.stamp("end")
        Ls = e.label("SK")
        e(f"""
        s_or_b32 s{sT0}, s2, s{sW}
        s_cmp_eq_u32 s{sT0}, 0
        s_cbranch_scc0 {Ls}
        s_add_u32 s{sT0}, s{sEP}, 1
        v_mov_b32 v{vT0}, s{sT0}
        s_mov_b64 exec, 1
        buffer_store_dword v{vT0}, v{vZ}, {sr(sWS)}, 0 offen
        s_mov_b64 exec, -1
        {Ls}:
        """)
        e.place("L_fail")
        if self.dbg == 4:
            if self.opt.get("wbl2"):
                e.raw("    s_waitcnt vmcnt(0)\n    s_sleep 127\n    s_sleep 127\n    buffer_wbl2 sc1\n    s_waitcnt vmcnt(0)")
            e(f"""
            s_mul_i32 s13, s13, 2
            s_add_u32 s13, s13, {self.opt.get("base", 6000)}
            s_cmp_eq_u32 s2, {self.opt.get("wg", 0)}
            s_cbranch_scc0 L_end
            L_leak:
            s_memrealtime {sr(sTS,2)}
            s_waitcnt lgkmcnt(0)
            s_sub_u32 s{sTS}, s{sTS}, s{sRT0}
            s_cmp_lt_u32 s{sTS}, s13
            s_cbranch_scc1 L_leak
            """)
        elif self.dbg == 2:
            e(f"""
            s_mov_b64 exec, -1
            s_memrealtime {sr(sTS,2)}
            s_waitcnt lgkmcnt(0)
            s_sub_u32 s{sTS}, s{sTS}, s{sRT0}
            v_writelane_b32 v{vSTAMP}, s{sTS}, 15
            s_mov_b32 s{sSA}, s{sPTR+18}
            s_mov_b32 s{sSA+1}, s{sPTR+19}
            s_mov_b32 s{sSA+2}, 256
            s_mov_b32 s{sSA+3}, 0x20000
            s_or_b32 s{sT0}, s2, s{sW}
            s_cmp_eq_u32 s{sT0}, 0
            s_cbranch_scc0 L_end
            buffer_store_dword v{vSTAMP}, v{vL4}, {sr(sSA)}, 0 offen
            """)
        elif self.dbg:
            e(f"""
            s_mov_b64 exec, -1
            s_memrealtime {sr(sTS,2)}
            s_waitcnt lgkmcnt(0)
            v_writelane_b32 v{vSTAMP}, s{sTS}, 63
            v_writelane_b32 v{vSTAMP}, s{sRT0}, 62
            v_writelane_b32 v{vSTAMP}, s13, 61
            s_lshl_b32 s{sT0}, s2, 2
            s_add_u32 s{sT0}, s{sT0}, s{sW}
            s_lshl_b32 s{sT0}, s{sT0}, 8
            s_add_u32 s{sT0}, s{sT0}, {OFF_DBG}
            buffer_store_dword v{vSTAMP}, v{vL4}, {sr(sWS)}, s{sT0} offen
            """)
        e.place("L_end")
        e("s_endpgm")
        for x in self.alt: e.raw(x)
        return e.text()

HEADER = open(os.path.join(os.path.dirname(os.path.abspath(__file__)), "header.txt")).read()

def generate(path, dbg=0, stop=None, opt=None):
    k = K(dbg=dbg, stop=stop, opt=opt)
    body = k.build()
    open(path, "w").write(wrap(body, 256, 256, LDS_SIZE, header=HEADER))
    if dbg: open(path + ".stamps", "w").write("\n".join(k.stamp_names))
    return k

if __name__ == "__main__":
    import argparse, json
    ap = argparse.ArgumentParser()
    ap.add_argument("out"); ap.add_argument("--dbg", type=int, default=0); ap.add_argument("--stop", type=int)
    ap.add_argument("--opt", default="{}")
    a = ap.parse_args()
    k = generate(a.out, a.dbg, a.stop, json.loads(a.opt))
    print("nops", k.e.nops, k.e.count)
```
